```python
import torch

def _softmax(x, axis=-1):
    return torch.softmax(x, dim=axis)
def _gelu(x):
    return torch.nn.functional.gelu(x, approximate="tanh")
def _silu(x):
    return torch.nn.functional.silu(x)
def _sigmoid(x):
    return torch.sigmoid(x)
def _layernorm(x, axis=-1, eps=1e-5):
    m = x.mean(dim=axis, keepdim=True)
    v = x.var(dim=axis, keepdim=True, unbiased=False)
    return (x - m) / torch.sqrt(v + eps)
def _scatter_add(tgt, idx, src, axis=0):
    return tgt.clone().index_add_(axis, idx, src)
def _segment_sum(src, seg, n):
    out = torch.zeros((n,) + src.shape[1:], dtype=src.dtype)
    return out.index_add_(0, seg, src)
def _pad(x, pw):
    flat = tuple(v for pair in reversed(pw) for v in pair)
    return torch.nn.functional.pad(x, flat)

kernel_name = 'interleave_layers__linear_attn_block__mixer_channel_mlp__prompt'

def setup_inputs():

    _w = (lambda a: (lambda t: t.to(torch.bfloat16) if t.is_floating_point() else t)(torch.as_tensor(a)))
    def _A_setup():
        B, S, D = 1, 2048, 576
        return {
            "x": _w((lambda *s: torch.randn(*s, dtype=torch.bfloat16) * 0.05)(B, S, D)),
            "wqkv": _w((lambda *s: torch.randn(*s, dtype=torch.bfloat16) * 0.1)(D, 3 * D)),
            "wo": _w((lambda *s: torch.randn(*s, dtype=torch.bfloat16) * 0.05)(D, D)),
        }
    _A_in = _A_setup()

    def _B_setup():
        B, S, D, F = 1, 2048, 576, 4608
        return {
            "x": _w((lambda *s: torch.randn(*s, dtype=torch.bfloat16) * 0.05)(B, S, D)),
            "w1": _w((lambda *s: torch.randn(*s, dtype=torch.bfloat16) * 3.2)(D, F) * (D ** -0.5)),
            "b1": _w((lambda *s: torch.randn(*s, dtype=torch.bfloat16) * 1.6)(F)),
            "w2": _w((lambda *s: torch.randn(*s, dtype=torch.bfloat16) * 1.6)(F, D) * (F ** -0.5)),
            "b2": _w((lambda *s: torch.randn(*s, dtype=torch.bfloat16) * 1.6)(D)),
        }
    _B_in = _B_setup()

    return {
        "A_x": _A_in["x"],
        "A_wqkv": _A_in["wqkv"],
        "A_wo": _A_in["wo"],
        "B_x": _B_in["x"],
        "B_w1": _B_in["w1"],
        "B_b1": _B_in["b1"],
        "B_w2": _B_in["w2"],
        "B_b2": _B_in["b2"],
    }

def reference(A_x, A_wqkv, A_wo, B_x, B_w1, B_b1, B_w2, B_b2):
    def _A_ref(x, wqkv, wo):
        B, S, D = x.shape
        H = 32; Dh = D // H
        qkv = (lambda x, *d: x.permute(*d))((x @ wqkv).reshape(B, S, 3, H, Dh), 2, 0, 3, 1, 4)
        q, k, v = qkv[0], qkv[1], qkv[2]
        phi = lambda t: torch.where(t > 0, t + 1, torch.exp(t)) + 1e-6
        pq, pk = phi(q), phi(k)
        kv = torch.einsum("bhsd,bhse->bhde", pk, v)
        z = torch.einsum("bhsd->bhd", pk)
        num = torch.einsum("bhqd,bhde->bhqe", pq, kv)
        den = torch.einsum("bhqd,bhd->bhq", pq, z)[..., None] + 1e-6
        o = num / den
        return (lambda x, *d: x.permute(*d))(o, 0, 2, 1, 3).reshape(B, S, D) @ wo

    def _B_ref(x, w1, b1, w2, b2):
        y = _layernorm(x, axis=-1)
        h = _gelu(torch.einsum("bsd,df->bsf", y, w1) + b1)
        return torch.einsum("bsf,fd->bsd", h, w2) + b2

    x = A_x
    x = x + _A_ref(_layernorm(x, axis=-1), A_wqkv, A_wo)
    x = x + _B_ref(_layernorm(x, axis=-1), B_w1, B_b1, B_w2, B_b2)
    x = x + _A_ref(_layernorm(x, axis=-1), A_wqkv, A_wo)
    x = x + _B_ref(_layernorm(x, axis=-1), B_w1, B_b1, B_w2, B_b2)
    return x
```

```python
import re

REG_RE = re.compile(r'^(-?)(?:abs\()?([vas])(?:(\d+)|\[(\d+):(\d+)\])\)?$')

def regs_of(op):
    op = op.strip()
    if op in ('vcc',): return [('s', 'vcc')]
    if op in ('exec',): return [('s', 'exec')]
    if op == 'm0': return [('s', 'm0')]
    m = REG_RE.match(op)
    if not m: return []
    k = m.group(2)
    if m.group(3) is not None:
        return [(k, int(m.group(3)))]
    return [(k, i) for i in range(int(m.group(4)), int(m.group(5)) + 1)]

TRANS = ('v_exp_f32', 'v_log_f32', 'v_rcp_f32', 'v_rsq_f32', 'v_sqrt_f32', 'v_sin_f32', 'v_cos_f32')

def mfma_passes(mn):
    if '32x32x16' in mn or '32x32x8' in mn: return 8
    if '16x16x32' in mn or '16x16x16' in mn: return 4
    raise ValueError(mn)

class Ins:
    __slots__ = ('mn', 'ops', 'text', 'cls', 'rd', 'wr', 'srcC', 'passes', 'lds_dma', 'wide_store_data')

def classify(text):
    t = text.split(';')[0].strip()
    parts = t.split(None, 1)
    mn = parts[0]
    rest = parts[1] if len(parts) > 1 else ''
    ops = [o.strip() for o in rest.split(',')] if rest else []
    mods = ''
    if ops:
        lp = ops[-1].split(None, 1)
        ops[-1] = lp[0]
        mods = lp[1] if len(lp) > 1 else ''
    I = Ins(); I.mn = mn; I.ops = ops; I.text = text; I.srcC = []; I.passes = 0; I.lds_dma = False; I.wide_store_data = []
    rd = []; wr = []
    R = lambda lst: [r for o in lst for r in regs_of(o)]
    if mn.startswith('v_mfma'):
        I.cls = 'mfma'; I.passes = mfma_passes(mn)
        wr = R(ops[:1]); rd = R(ops[1:]); I.srcC = R(ops[3:4])
    elif mn.startswith('buffer_load') or mn.startswith('global_load'):
        I.cls = 'vmem'
        if ' lds' in (' ' + mods) or 'lds' in mn:
            I.lds_dma = True; rd = R(ops) + [('s', 'm0')]
        else:
            wr = R(ops[:1]); rd = R(ops[1:])
    elif mn.startswith('buffer_store') or mn.startswith('global_store') or mn.startswith('buffer_atomic') or mn.startswith('global_atomic'):
        I.cls = 'vmem'; rd = R(ops)
        if 'atomic' in mn and 'sc0' in mods:
            wr = R(ops[:1])
        if mn.endswith('x4') or mn.endswith('x3'):
            I.wide_store_data = R(ops[:1]) if mn.startswith('buffer') else R(ops[1:2])
    elif mn.startswith('buffer_') :
        I.cls = 'vmem0'
    elif mn.startswith('ds_read') or mn.startswith('ds_bpermute') or mn.startswith('ds_swizzle'):
        I.cls = 'ds'; wr = R(ops[:1]); rd = R(ops[1:])
    elif mn.startswith('ds_'):
        I.cls = 'ds'; rd = R(ops)
    elif mn.startswith('s_load') or mn.startswith('s_memtime') or mn.startswith('s_memrealtime'):
        I.cls = 'smem'; wr = R(ops[:1]); rd = R(ops[1:])
    elif mn.startswith('s_'):
        I.cls = 'salu'
        if mn.startswith(('s_cmp', 's_waitcnt', 's_barrier', 's_nop', 's_branch', 's_cbranch', 's_endpgm', 's_setprio', 's_sleep', 's_bitcmp')):
            rd = R(ops)
        else:
            wr = R(ops[:1]); rd = R(ops[1:])
            if 'saveexec' in mn: wr += [('s', 'exec')]
    elif mn.startswith('v_'):
        I.cls = 'valu'
        if mn.startswith('v_cmp'):
            wr = R(ops[:1]); rd = R(ops[1:])
        elif 'permlane' in mn and 'swap' in mn:
            wr = R(ops); rd = R(ops)
        elif mn.startswith(('v_add_co', 'v_sub_co', 'v_addc_co', 'v_subb_co')):
            wr = R(ops[:2]); rd = R(ops[2:])
        else:
            wr = R(ops[:1]); rd = R(ops[1:])
            if mn.startswith(('v_fmac', 'v_dot2c', 'v_pk_fmac')): rd += wr
            if mn.startswith('v_cndmask') and len(ops) == 3: rd += [('s', 'vcc')]
    else:
        raise ValueError('unknown instr: ' + text)
    I.rd = rd; I.wr = wr
    return I

class Emitter:
    def __init__(self):
        self.lines = []
        self.reset_state()
        self.n_nops = 0
    def reset_state(self):
        self.hist = []
        self.vm_issued = 0; self.vm_done = 0
        self.lg_issued = 0; self.lg_done = 0
        self.pend = {}
        self.smem_pending = False
    def raw(self, s):
        self.lines.append(s)
    def label(self, name):
        self.lines.append(name + ':')
    def comment(self, s):
        self.lines.append('    ; ' + s)
    def _emit(self, I, states=1):
        self.lines.append('    ' + I.text)
        self.hist.append((I, states))
        if len(self.hist) > 40: self.hist.pop(0)
    def wait(self, vm=None, lg=None):
        parts = []
        if vm is not None:
            assert 0 <= vm <= 63
            parts.append('vmcnt(%d)' % vm); self.vm_done = max(self.vm_done, self.vm_issued - vm)
        if lg is not None:
            assert 0 <= lg <= 15
            parts.append('lgkmcnt(%d)' % lg); self.lg_done = max(self.lg_done, self.lg_issued - lg)
            if lg == 0: self.smem_pending = False
        self._emit(classify('s_waitcnt ' + ' '.join(parts)))
    def wait_vm_seq(self, seq):
        if self.vm_done < seq:
            self.wait(vm=min(63, self.vm_issued - seq))
    def wait_lg_seq(self, seq):
        if self.lg_done < seq:
            self.wait(lg=min(15, self.lg_issued - seq))
    def _auto_wait(self, I):
        need_vm = 0; need_lg = 0; need_sm = False
        for r in I.rd + I.wr:
            p = self.pend.get(r)
            if p is None: continue
            if p[0] == 'vm': need_vm = max(need_vm, p[1])
            elif p[0] == 'lg': need_lg = max(need_lg, p[1])
            elif p[0] == 'sm': need_sm = True
        vm = lg = None
        if need_vm > self.vm_done: vm = min(63, self.vm_issued - need_vm)
        if need_lg > self.lg_done: lg = min(15, self.lg_issued - need_lg)
        if lg is not None and self.smem_pending: lg = 0
        if need_sm and self.smem_pending: lg = 0
        if vm is not None or lg is not None:
            self.wait(vm=vm, lg=lg)
        for r in I.rd + I.wr:
            self.pend.pop(r, None)
    def _hazard(self, I):
        need = 0
        dist = 0
        rd = set(I.rd); wr = set(I.wr)
        vrd = {r for r in rd if r[0] in 'va'}; vwr = {r for r in wr if r[0] in 'va'}
        srd = {r for r in rd if r[0] == 's'}
        for (P, st) in reversed(self.hist):
            pw = set(P.wr)
            req = 0
            if P.cls == 'valu':
                if I.cls == 'mfma' and (pw & vrd): req = max(req, 2)
                if P.mn in TRANS and I.cls == 'valu' and (pw & vrd): req = max(req, 1)
                psw = {r for r in pw if r[0] == 's'}
                if psw & srd:
                    if I.cls == 'valu': req = max(req, 4 if ('readlane' in I.mn or 'writelane' in I.mn) else 2)
                    if I.cls == 'vmem': req = max(req, 5)
                    if I.cls == 'salu': req = max(req, 1)
                if I.cls == 'valu' and ('readlane' in I.mn or 'readfirstlane' in I.mn) and (pw & vrd): req = max(req, 1)
                if I.cls == 'valu' and ('permlane' in I.mn or 'dpp' in I.text or 'row_' in I.text or 'quad_perm' in I.text) and (pw & vrd): req = max(req, 2)
                if ('sdwa' in P.text or 'op_sel' in P.text) and I.cls == 'valu' and (pw & (vrd | vwr)): req = max(req, 1)
            if P.cls == 'mfma':
                n = P.passes
                if I.cls == 'mfma':
                    c = set(I.srcC)
                    ab = set(r for o in I.ops[1:3] for r in regs_of(o))
                    if pw & ab: req = max(req, n + 4)
                    if pw & c:
                        if c == pw and I.passes == n: req = max(req, 2 if n == 2 else 0)
                        else: req = max(req, n + 2)
                    elif pw & vwr:
                        req = max(req, n + 2)
                elif I.cls in ('valu', 'vmem', 'ds'):
                    if pw & (vrd | vwr): req = max(req, n + 4)
                    if I.cls == 'valu' and (set(P.srcC) & vwr): req = max(req, n - 1)
            if P.cls == 'salu' and ('s', 'm0') in pw and I.lds_dma: req = max(req, 1)
            if P.wide_store_data and (set(P.wide_store_data) & vwr): req = max(req, 2)
            if req > dist: need = max(need, req - dist)
            dist += st
            if dist > 24: break
        while need > 0:
            k = min(need, 16)
            self._emit(classify('s_nop %d' % (k - 1)), states=k)
            self.n_nops += 1
            need -= k
    def __call__(self, text):
        for t in text.strip().split('\n'):
            t = t.strip()
            if not t or t.startswith(';'):
                continue
            self.one(t)
    def one(self, text):
        I = classify(text)
        if I.mn == 's_waitcnt':
            m = re.search(r'vmcnt\((\d+)\)', text); l = re.search(r'lgkmcnt\((\d+)\)', text)
            self.wait(vm=int(m.group(1)) if m else None, lg=int(l.group(1)) if l else None)
            return 0
        self._auto_wait(I)
        self._hazard(I)
        st = 1
        if I.mn == 's_nop': st = int(I.ops[0]) + 1
        self._emit(I, st)
        if I.cls == 'vmem':
            self.vm_issued += 1
            assert self.vm_issued - self.vm_done <= 63 or True
            for r in I.wr: self.pend[r] = ('vm', self.vm_issued)
            return self.vm_issued
        if I.cls == 'ds':
            self.lg_issued += 1
            for r in I.wr: self.pend[r] = ('lg', self.lg_issued)
            return self.lg_issued
        if I.cls == 'smem':
            self.smem_pending = True
            for r in I.wr: self.pend[r] = ('sm', 0)
        return 0
    def text(self):
        return '\n'.join(self.lines) + '\n'

def vq(i, n=4, k='v'):
    return '%s[%d:%d]' % (k, i, i + n - 1) if n > 1 else '%s%d' % (k, i)
def aq(i, n=4):
    return vq(i, n, 'a')
```

```python
import sys, math, struct
from asmlib import *

NAME = 'interleave_layers__linear_attn_block__mixer_channel_mlp__prompt'
KA_X, KA_WQKV, KA_WO, KA_W1, KA_B1, KA_W2, KA_B2, KA_OUT, KA_DBG, KA_WS = 0, 8, 16, 32, 40, 48, 56, 64, 72, 80
XB = 2048 * 576 * 2
WS_STREAM = 0
STREAM_WAVE = 324 * 1024
WS_PQ = 0xA20000
WS_X1 = 0xC60000
WS_X2 = 0xEA0000
WS_X3 = 0x10E0000
WS_KVT = [0x1320000, 0x1330000]
KVT_BYTES = 32 * 19 * 96
WS_PART = 0x1340000
OOB = 0x80000000

def f32(x):
    return '0x%08x' % struct.unpack('<I', struct.pack('<f', x))[0]

class K(Emitter):
    def __init__(self, label, grid, block, lds, vgpr, accum, sgpr=96):
        super().__init__()
        self.label_name = label; self.grid = grid; self.block = block; self.lds = lds
        self.vgpr = vgpr; self.accum = accum; self.sgpr = sgpr
        self.uid = 0
    def L(self, s):
        return '.L_%s_%s' % (self.label_name, s)
    def begin(self):
        self.raw('.globl %s' % self.label_name)
        self.raw('.p2align 8')
        self.raw('.type %s,@function' % self.label_name)
        self.label(self.label_name)
        self('s_cmp_ge_u32 s2, %d' % self.grid)
        self('s_cbranch_scc1 %s' % self.L('end'))
    def end(self):
        self.label(self.L('end'))
        self('s_endpgm')
    def desc(self):
        return '\n'.join(['.p2align 6', '.amdhsa_kernel %s' % self.label_name,
            '  .amdhsa_next_free_vgpr %d' % self.vgpr, '  .amdhsa_next_free_sgpr %d' % self.sgpr,
            '  .amdhsa_accum_offset %d' % self.accum, '  .amdhsa_group_segment_fixed_size 0',
            '  .amdhsa_kernarg_size 88', '  .amdhsa_user_sgpr_count 2',
            '  .amdhsa_user_sgpr_kernarg_segment_ptr 1', '  .amdhsa_system_sgpr_workgroup_id_x 1',
            '.end_amdhsa_kernel']) + '\n'
    def launch_line(self):
        return '; @launch kernel=%s grid=(%d,1,1) block=(%d,1,1) lds=%d' % (self.label_name, self.grid, self.block, self.lds)
    def srd(self, d, base, off, nbytes, soff=None):
        if off:
            self('s_add_u32 s%d, s%d, 0x%x' % (d, base, off))
            self('s_addc_u32 s%d, s%d, 0' % (d + 1, base + 1))
        else:
            self('s_mov_b32 s%d, s%d' % (d, base))
            self('s_mov_b32 s%d, s%d' % (d + 1, base + 1))
        if soff is not None:
            self('s_add_u32 s%d, s%d, s%d' % (d, d, soff))
            self('s_addc_u32 s%d, s%d, 0' % (d + 1, d + 1))
        self('s_mov_b32 s%d, 0x%x' % (d + 2, nbytes))
        self('s_mov_b32 s%d, 0x20000' % (d + 3))
    def ids(self, swave):
        self('v_lshrrev_b32 v4, 6, v0')
        self('v_and_b32 v1, 63, v0')
        self('v_readfirstlane_b32 s%d, v4' % swave)
        self('v_lshrrev_b32 v2, 4, v1')
        self('v_and_b32 v3, 15, v1')

def g2_stream_index(kg, nt):
    if kg < 12: return 162 + 9 * kg + nt
    return 270 + 6 * nt + (kg - 12)

def gen_prep():
    k = K('prep_kernel', 288, 256, 36864, 64, 64)
    k.begin()
    k('s_load_dwordx2 s[4:5], s[0:1], %d' % KA_W1)
    k('s_load_dwordx2 s[6:7], s[0:1], %d' % KA_W2)
    k('s_load_dwordx2 s[12:13], s[0:1], %d' % KA_WS)
    k.ids(20)
    k('s_waitcnt lgkmcnt(0)')
    k.srd(16, 12, WS_KVT[0], 0x20000)
    k('s_cmp_ge_u32 s2, 32')
    k('s_cbranch_scc1 %s' % k.L('nz'))
    k('s_lshl_b32 s21, s2, 12')
    k('v_lshlrev_b32 v5, 4, v0')
    for i in range(4): k('v_mov_b32 v%d, 0' % (8 + i))
    k('buffer_store_dwordx4 v[8:11], v5, s[16:19], s21 offen')
    k.label(k.L('nz'))
    k.reset_state()
    k('s_cmp_ge_u32 s2, 144')
    k('s_cbranch_scc1 %s' % k.L('u2'))
    k.srd(8, 4, 0, 576 * 9216)
    k('s_lshr_b32 s22, s2, 3')
    k('s_and_b32 s23, s2, 7')
    k('s_mul_i32 s24, s22, %d' % (32 * 9216))
    k('s_mul_i32 s25, s23, 1152')
    k('s_add_u32 s24, s24, s25')
    k('s_mov_b32 s26, 8064')
    k('s_branch %s' % k.L('j1'))
    k.label(k.L('u2'))
    k.srd(8, 6, 0, 4608 * 1152)
    k('s_sub_u32 s27, s2, 144')
    k('s_mul_i32 s24, s27, 36864')
    k('s_mul_i32 s23, s27, 3641')
    k('s_lshr_b32 s23, s23, 16')
    k('s_mul_i32 s25, s23, 18')
    k('s_sub_u32 s22, s27, s25')
    k('s_mov_b32 s26, 0')
    k.label(k.L('j1'))
    k.reset_state()
    k('s_mul_i32 s28, s20, 576')
    k('v_add_u32 v5, s28, v1')
    k('s_mul_i32 s29, s20, 9216')
    k('s_mov_b32 s30, 14564')
    for t in range(9):
        k('v_mul_lo_u32 v6, v5, s30')
        k('v_lshrrev_b32 v6, 20, v6')
        k('v_mul_lo_u32 v6, v6, s26')
        k('v_lshl_add_u32 v6, v5, 4, v6')
        k('s_add_u32 m0, s29, %d' % (t * 1024))
        k('buffer_load_dwordx4 v6, s[8:11], s24 offen lds')
        k('v_add_u32 v5, 64, v5')
    k('s_lshl_b32 s31, s23, 2')
    k('s_add_u32 s31, s31, s20')
    k('s_mul_i32 s31, s31, %d' % STREAM_WAVE)
    k.srd(16, 12, WS_STREAM, STREAM_WAVE, soff=31)
    k('v_lshlrev_b32 v7, 4, v1')
    k('v_lshrrev_b32 v8, 2, v3')
    k('v_and_b32 v9, 3, v3')
    k('s_waitcnt vmcnt(0)')
    k('s_barrier')
    k('s_cmp_ge_u32 s2, 144')
    k('s_cbranch_scc1 %s' % k.L('t2'))
    k('v_lshl_add_u32 v10, v2, 3, v8')
    k('v_mul_u32_u24 v10, 1152, v10')
    k('v_lshl_add_u32 v10, v9, 3, v10')
    k('s_mul_i32 s32, s20, 96')
    k('v_add_u32 v10, s32, v10')
    k('s_mul_i32 s33, s22, 3072')
    for q in range(3):
        for i in range(3):
            d = 16 + 4 * (3 * q + i)
            k('ds_read_b64_tr_b16 %s, v10 offset:%d' % (vq(d, 2), 384 * q + 32 * i))
            k('ds_read_b64_tr_b16 %s, v10 offset:%d' % (vq(d + 2, 2), 384 * q + 32 * i + 4608))
        for i in range(3):
            d = 16 + 4 * (3 * q + i)
            k('buffer_store_dwordx4 %s, v7, s[16:19], s33 offen offset:%d' % (vq(d), 1024 * i))
        k('s_add_u32 s33, s33, %d' % (54 * 1024))
    k('s_branch %s' % k.L('end'))
    k.label(k.L('t2'))
    k.reset_state()
    k('v_lshl_add_u32 v10, v2, 2, v8')
    k('v_mul_u32_u24 v10, 1152, v10')
    k('s_mul_i32 s32, s20, 288')
    k('v_add_u32 v10, s32, v10')
    k('v_lshl_add_u32 v11, v9, 3, v10')
    k('v_lshl_add_u32 v10, v9, 4, v10')
    k('s_mul_i32 s33, s22, 9')
    k('s_add_u32 s33, s33, 162')
    k('s_add_u32 s34, s22, 258')
    k('s_cmp_lt_u32 s22, 12')
    k('s_cselect_b32 s33, s33, s34')
    k('s_cselect_b32 s34, 1, 6')
    k('s_lshl_b32 s34, s34, 10')
    k('s_lshl_b32 s33, s33, 10')
    for nt in range(9):
        d = 16 + 4 * nt
        a, o = (10, 64 * (nt // 2) + 8 * (nt % 2)) if nt < 8 else (11, 256)
        k('ds_read_b64_tr_b16 %s, v%d offset:%d' % (vq(d, 2), a, o))
        k('ds_read_b64_tr_b16 %s, v%d offset:%d' % (vq(d + 2, 2), a, o + 18432))
        if nt % 3 == 2:
            for n2 in range(nt - 2, nt + 1):
                k('buffer_store_dwordx4 %s, v7, s[16:19], s33 offen' % vq(16 + 4 * n2))
                k('s_add_u32 s33, s33, s34')
    k.end()
    return k

def ln_stats(k, X, nq, ones, d1, d2, tmp, double):
    for i in range(4): k('v_mov_b32 v%d, 0x3f803f80' % (ones + i))
    for kk in range(nq):
        x = vq(X + 4 * kk)
        k('v_mfma_f32_16x16x32_bf16 %s, %s, %s, %s' % (vq(d1), vq(ones), x, vq(d1) if kk else '0'))
        k('v_mfma_f32_16x16x32_bf16 %s, %s, %s, %s' % (vq(d2), x, x, vq(d2) if kk else '0'))
    t0, t1, t2 = tmp, tmp + 1, tmp + 2
    k('v_lshlrev_b32 v%d, 2, v2' % t0)
    k('v_sub_u32 v%d, v3, v%d' % (t0, t0))
    k('v_mov_b32 v%d, 0' % t1)
    for r in range(4):
        k('v_cmp_eq_u32 vcc, %d, v%d' % (r, t0))
        k('v_cndmask_b32 v%d, v%d, v%d, vcc' % (t1, t1, d2 + r))
    k('v_mov_b32 v%d, v%d' % (t2, t1))
    k('v_permlane32_swap_b32 v%d, v%d' % (t1, t2))
    k('v_add_f32 v%d, v%d, v%d' % (t1, t1, t2))
    k('v_mov_b32 v%d, v%d' % (t2, t1))
    k('v_permlane16_swap_b32 v%d, v%d' % (t1, t2))
    k('v_add_f32 v%d, v%d, v%d' % (t1, t1, t2))
    inv = f32(1.0 / 576.0)
    k('v_mul_f32 v%d, %s, v%d' % (t2, inv, d1))
    k('v_mul_f32 v%d, %s, v%d' % (t1, inv, t1))
    k('v_fma_f32 v%d, -v%d, v%d, v%d' % (t1, t2, t2, t1))
    k('v_max_f32 v%d, 0, v%d' % (t1, t1))
    k('v_add_f32 v%d, %s, v%d' % (t0, f32(1e-5), t1))
    k('v_rsq_f32 v%d, v%d' % (t0, t0))
    if double:
        k('v_mul_f32 v%d, v%d, v%d' % (t1, t1, t0))
        k('v_mul_f32 v%d, v%d, v%d' % (t1, t1, t0))
        k('v_add_f32 v%d, %s, v%d' % (t1, f32(1e-5), t1))
        k('v_rsq_f32 v%d, v%d' % (t1, t1))
        k('v_mul_f32 v%d, v%d, v%d' % (t0, t0, t1))
    k('v_mul_f32 v%d, v%d, v%d' % (t1, t2, t0))
    k('v_sub_f32 v%d, 0, v%d' % (t1, t1))

def ln_apply(k, x, sc, tmp, evenodd, smask):
    for i in range(4):
        k('v_lshlrev_b32 v%d, 16, v%d' % (tmp + i, x + i))
        k('v_and_b32 v%d, s%d, v%d' % (tmp + 4 + i, smask, x + i))
    for i in range(8):
        k('v_fma_f32 v%d, v%d, v%d, v%d' % (tmp + i, tmp + i, sc, sc + 1))
    if evenodd:
        for i in range(4):
            k('v_cvt_pk_bf16_f32 v%d, v%d, v%d' % (x + i, tmp + 2 * i, tmp + 2 * i + 1))
    else:
        for i in range(4):
            k('v_cvt_pk_bf16_f32 v%d, v%d, v%d' % (x + i, tmp + i, tmp + 4 + i))

LOG2E = 1.4426950408889634

def phi_ops(k, regs, tmp):
    n = len(regs)
    for i, r in enumerate(regs): k('v_mul_f32 v%d, %s, v%d' % (tmp + i, f32(LOG2E), r))
    for i, r in enumerate(regs): k('v_min_f32 v%d, 0, v%d' % (tmp + i, tmp + i))
    for i, r in enumerate(regs): k('v_exp_f32 v%d, v%d' % (tmp + i, tmp + i))
    for i, r in enumerate(regs): k('v_max_f32 v%d, 0, v%d' % (r, r))
    for i, r in enumerate(regs): k('v_add_f32 v%d, v%d, v%d' % (r, r, tmp + i))
    for i, r in enumerate(regs): k('v_add_f32 v%d, %s, v%d' % (r, f32(1e-6), r))

def gen_qkv(layer):
    UNIT = 28672
    k = K('qkv%d_kernel' % layer, 256, 256, 5 * UNIT, 224, 224)
    k.begin()
    k('s_load_dwordx2 s[4:5], s[0:1], %d' % KA_X)
    k('s_load_dwordx2 s[6:7], s[0:1], %d' % KA_WQKV)
    k('s_load_dwordx2 s[12:13], s[0:1], %d' % KA_WS)
    k.ids(20)
    k('s_and_b32 s21, s2, 7')
    k('s_lshr_b32 s22, s2, 3')
    k('s_lshl_b32 s23, s22, 6')
    k('s_lshl_b32 s24, s20, 4')
    k('s_add_u32 s23, s23, s24')
    k('v_add_u32 v4, s23, v3')
    k('v_mul_u32_u24 v13, 1152, v4')
    k('v_lshl_add_u32 v4, v2, 4, v13')
    k('s_waitcnt lgkmcnt(0)')
    if layer == 0: k.srd(8, 4, 0, XB)
    else: k.srd(8, 12, WS_X2, XB)
    X = 32
    for kk in range(18):
        k('buffer_load_dwordx4 %s, v4, s[8:11], 0 offen offset:%d' % (vq(X + 4 * kk), 64 * kk))
    k.srd(16, 6, 0, 576 * 3456)
    k('s_lshl_b32 s24, s20, 6')
    k('v_add_u32 v28, s24, v1')
    k('s_mul_i32 s25, s21, 144')
    for t in range(7):
        d = 5 + t
        k('v_mul_u32_u24 v29, 7282, v28')
        k('v_lshrrev_b32 v29, 22, v29')
        k('v_mul_u32_u24 v30, 576, v29')
        k('v_sub_u32 v30, v28, v30')
        k('v_mul_u32_u24 v31, 7282, v30')
        k('v_lshrrev_b32 v31, 16, v31')
        k('v_mul_u32_u24 v%d, 1152, v29' % d)
        k('v_lshl_add_u32 v%d, v30, 4, v%d' % (d, d))
        k('v_mul_u32_u24 v31, %d, v31' % (3456 - 144))
        k('v_add3_u32 v%d, v%d, v31, s25' % (d, d))
        if t < 6: k('v_add_u32 v28, 256, v28')
    k('s_lshl_b32 s26, s20, 10')
    dma_seq = {}
    def dma_unit(U):
        k('s_mov_b32 s27, %d' % (U * 64 * 3456))
        for t in range(7):
            k('s_add_u32 m0, s26, %d' % ((U % 5) * UNIT + t * 4096))
            dma_seq[U] = k.one('buffer_load_dwordx4 v%d, s[16:19], s27 offen lds' % (5 + t))
    for U in range(5): dma_unit(U)
    k.srd(36, 12, WS_PQ, XB)
    k.srd(40, 12, WS_KVT[layer], KVT_BYTES)
    k('v_lshl_add_u32 v13, v2, 3, v13')
    k('v_add_u32 v13, s25, v13')
    k('v_mov_b32 v14, 0x%x' % OOB)
    k('v_cmp_gt_u32 vcc, 2, v2')
    k('v_cndmask_b32 v14, v14, v13, vcc')
    k('v_lshrrev_b32 v28, 2, v3')
    k('v_lshlrev_b32 v28, 1, v28')
    k('v_lshl_add_u32 v28, v2, 3, v28')
    k('v_mul_u32_u24 v28, 144, v28')
    k('v_and_b32 v29, 3, v3')
    k('v_lshl_add_u32 v196, v29, 3, v28')
    k('v_add_u32 v197, %d, v196' % (2 * UNIT))
    k('v_add_u32 v198, %d, v196' % (4 * UNIT))
    k('s_mul_i32 s28, s21, %d' % (76 * 96))
    for n in range(6):
        la, ga = 16 + n, 22 + n
        k('v_add_u32 v28, %d, v0' % (256 * n))
        k('v_mul_u32_u24 v29, 3641, v28')
        k('v_lshrrev_b32 v29, 16, v29')
        k('v_mul_u32_u24 v30, 18, v29')
        k('v_sub_u32 v30, v28, v30')
        k('v_mul_u32_u24 v31, 3450, v29')
        k('v_lshrrev_b32 v31, 16, v31')
        k('v_mul_u32_u24 v200, 19, v31')
        k('v_sub_u32 v200, v29, v200')
        k('v_mul_u32_u24 v31, 18, v31')
        k('v_add_u32 v201, v31, v30')
        k('v_add_u32 v202, v31, v200')
        k('v_cmp_gt_u32 vcc, 18, v200')
        k('v_mov_b32 v203, 72')
        k('v_cndmask_b32 v202, v203, v202, vcc')
        k('v_lshrrev_b32 v203, 4, v201')
        k('v_mul_u32_u24 v203, 5, v203')
        k('v_lshrrev_b32 v204, 4, v202')
        k('v_add_lshl_u32 v%d, v203, v204, 10' % la)
        k('v_and_b32 v203, 15, v202')
        k('v_lshl_add_u32 v%d, v203, 4, v%d' % (la, la))
        k('v_bfe_u32 v203, v201, 2, 2')
        k('v_lshl_add_u32 v%d, v203, 8, v%d' % (la, la))
        k('v_and_b32 v203, 3, v201')
        k('v_lshl_add_u32 v%d, v203, 2, v%d' % (la, la))
        k('v_add_u32 v203, 6, v30')
        k('v_cmp_gt_u32 vcc, 16, v30')
        k('v_mul_u32_u24 v%d, 96, v29' % ga)
        k('v_cndmask_b32 v203, v203, v30, vcc')
        k('v_lshl_add_u32 v%d, v203, 2, v%d' % (ga, ga))
        k('v_add_u32 v%d, s28, v%d' % (ga, ga))
        if n == 5:
            k('v_cmp_gt_u32 vcc, 88, v0')
            k('v_mov_b32 v203, 0x%x' % OOB)
            k('v_mov_b32 v204, 0')
            k('v_cndmask_b32 v%d, v203, v%d, vcc' % (ga, ga))
            k('v_cndmask_b32 v%d, v204, v%d, vcc' % (la, la))
    ACC = 104; RING = 164
    k('s_mov_b32 s29, 0xffff0000')
    ln_stats(k, X, 18, RING, ACC, ACC + 4, 28, False)
    for kk in range(18): ln_apply(k, X + 4 * kk, 28, 200, True, 29)
    NF = 18 * 15
    def frag_read(f):
        ks, tl = divmod(f, 15)
        U, h = divmod(ks, 2)
        part, i = divmod(tl, 5)
        s = U % 5
        base = 196 + s // 2
        off = (s % 2) * UNIT + part * 9216 + h * 4608 + 32 * i
        d = RING + 4 * (f % 8)
        k('ds_read_b64_tr_b16 %s, v%d offset:%d' % (vq(d, 2), base, off))
        k('ds_read_b64_tr_b16 %s, v%d offset:%d' % (vq(d + 2, 2), base, off + 144))
    def sync_unit(U):
        k.wait_vm_seq(dma_seq[U])
        k('s_barrier')
    PF = 6
    sync_unit(0)
    for f in range(PF): frag_read(f)
    for f in range(NF):
        ks, tl = divmod(f, 15)
        U, h = divmod(ks, 2)
        if h == 0 and tl == 8 and U < 8:
            sync_unit(U + 1)
            if U >= 1 and U + 4 <= 8: dma_unit(U + 4)
        if f + PF < NF: frag_read(f + PF)
        w = vq(RING + 4 * (f % 8)); y = vq(X + 4 * ks); a = vq(ACC + 4 * tl)
        c = a if ks else '0'
        if tl < 5: k('v_mfma_f32_16x16x32_bf16 %s, %s, %s, %s' % (a, w, y, c))
        else: k('v_mfma_f32_16x16x32_bf16 %s, %s, %s, %s' % (a, y, w, c))
    T = 200
    PK = 164; PV = 176
    for i in range(5):
        a = ACC + 4 * (5 + i)
        phi_ops(k, [a, a + 1, a + 2, a + 3], T + 4 * (i % 2))
        k('v_cvt_pk_bf16_f32 v%d, v%d, v%d' % (PK + 2 * i, a, a + 1))
        k('v_cvt_pk_bf16_f32 v%d, v%d, v%d' % (PK + 2 * i + 1, a + 2, a + 3))
    for i in range(5):
        a = ACC + 4 * (10 + i)
        k('v_cvt_pk_bf16_f32 v%d, v%d, v%d' % (PV + 2 * i, a, a + 1))
        k('v_cvt_pk_bf16_f32 v%d, v%d, v%d' % (PV + 2 * i + 1, a + 2, a + 3))
    k('v_cmp_eq_u32 vcc, 8, v3')
    k('v_mov_b32 v%d, 0x3f803f80' % T)
    k('v_cndmask_b32 v%d, v%d, v%d, vcc' % (PV + 8, PV + 8, T))
    k('v_cndmask_b32 v%d, v%d, v%d, vcc' % (PV + 9, PV + 9, T))
    pairs = [(i, j) for i in range(5) for j in range(5) if abs(i - j) <= 1 or j == 4]
    assert len(pairs) == 16
    for n, (i, j) in enumerate(pairs):
        k('v_mfma_f32_16x16x16_bf16 %s, %s, %s, 0' % (vq(X + 4 * n), vq(PK + 2 * i, 2), vq(PV + 2 * j, 2)))
    k('s_barrier')
    k('s_mul_i32 s30, s20, 25600')
    k('v_lshlrev_b32 v199, 4, v1')
    k('v_add_u32 v199, s30, v199')
    for i in range(5):
        a = ACC + 4 * i
        phi_ops(k, [a, a + 1, a + 2, a + 3], T + 4 * (i % 2))
        k('v_cvt_pk_bf16_f32 v%d, v%d, v%d' % (a, a, a + 1))
        k('v_cvt_pk_bf16_f32 v%d, v%d, v%d' % (a + 1, a + 2, a + 3))
        if i == 0:
            for n, (pi, pj) in enumerate(pairs):
                k('ds_write_b128 v199, %s offset:%d' % (vq(X + 4 * n), (5 * pi + pj) * 1024))
        k('buffer_store_dwordx2 %s, v%d, s[36:39], 0 offen offset:%d' % (vq(a, 2), 13 if i < 4 else 14, 32 * i))
    k('s_waitcnt lgkmcnt(0)')
    k('s_barrier')
    for n in range(6):
        d = 164 + 4 * n
        k('v_add_u32 v199, 51200, v%d' % (16 + n))
        k('ds_read_b32 v%d, v%d' % (d, 16 + n))
        k('ds_read_b32 v%d, v%d offset:25600' % (d + 1, 16 + n))
        k('ds_read_b32 v%d, v199' % (d + 2))
        k('ds_read_b32 v%d, v199 offset:25600' % (d + 3))
    for n in range(6):
        d = 164 + 4 * n
        k('v_add_f32 v%d, v%d, v%d' % (d, d, d + 1))
        k('v_add_f32 v%d, v%d, v%d' % (d + 2, d + 2, d + 3))
        k('v_add_f32 v%d, v%d, v%d' % (d, d, d + 2))
        k('buffer_atomic_add_f32 v%d, v%d, s[40:43], 0 offen' % (d, 22 + n))
    k.end()
    return k

def gen_attn(layer):
    KVB = 0; WOI = 32768
    k = K('attn%d_kernel' % layer, 256, 256, WOI + 84 * 1024, 216 + 128, 216)
    k.begin()
    k('s_load_dwordx2 s[4:5], s[0:1], %d' % KA_X)
    k('s_load_dwordx2 s[6:7], s[0:1], %d' % KA_WO)
    k('s_load_dwordx2 s[12:13], s[0:1], %d' % KA_WS)
    k.ids(20)
    k('s_and_b32 s21, s2, 7')
    k('s_lshr_b32 s22, s2, 3')
    k('s_lshl_b32 s23, s22, 6')
    k('s_lshl_b32 s24, s20, 4')
    k('s_add_u32 s23, s23, s24')
    k('v_add_u32 v4, s23, v3')
    k('v_mul_u32_u24 v4, 1152, v4')
    k('v_lshlrev_b32 v5, 5, v0')
    k('s_waitcnt lgkmcnt(0)')
    k.srd(8, 12, WS_KVT[layer], KVT_BYTES)
    ST = 64
    for n in range(8):
        k('s_mov_b32 s25, %d' % (n * 8192))
        k('buffer_load_dwordx4 %s, v5, s[8:11], s25 offen' % vq(ST + 8 * n))
        k('buffer_load_dwordx4 %s, v5, s[8:11], s25 offen offset:16' % vq(ST + 8 * n + 4))
    k.srd(16, 6, 0, 576 * 1152)
    k('s_lshl_b32 s24, s20, 6')
    k('v_add_u32 v6, s24, v1')
    k('s_mul_i32 s25, s21, 144')
    k('s_lshl_b32 s26, s20, 10')
    k('s_mov_b32 s27, 58255')
    last_dma = 0
    for t in range(21):
        k('v_mul_lo_u32 v7, v6, s27')
        k('v_lshrrev_b32 v7, 19, v7')
        k('v_mul_u32_u24 v7, %d, v7' % (1152 - 144))
        k('v_lshl_add_u32 v7, v6, 4, v7')
        k('s_add_u32 m0, s26, %d' % (WOI + t * 4096))
        last_dma = k.one('buffer_load_dwordx4 v7, s[16:19], s25 offen lds')
        if t < 20: k('v_add_u32 v6, 256, v6')
    k.srd(36, 12, WS_PQ, XB)
    k('v_lshlrev_b32 v6, 4, v2')
    k('v_mov_b32 v7, 20')
    k('v_cmp_eq_u32 vcc, 2, v2')
    k('v_cndmask_b32 v6, v6, v7, vcc')
    k('v_add_u32 v6, v4, v6')
    k('v_mov_b32 v7, 0x%x' % OOB)
    k('v_cmp_eq_u32 vcc, 3, v2')
    k('v_cndmask_b32 v6, v6, v7, vcc')
    for h in range(24):
        k('buffer_load_dwordx4 %s, v6, s[36:39], 0 offen offset:%d' % (aq(4 * h), 36 * h))
    k('v_lshlrev_b32 v5, 4, v0')
    for n in range(8):
        s = ST + 8 * n
        for i in range(4): k('v_cvt_pk_bf16_f32 v%d, v%d, v%d' % (s + i, s + 2 * i, s + 2 * i + 1))
        k('ds_write_b128 v5, %s offset:%d' % (vq(s), KVB + n * 4096))
        if n == 3:
            for h in range(24, 32):
                k('buffer_load_dwordx4 %s, v6, s[36:39], 0 offen offset:%d' % (aq(4 * h), 36 * h))
    if layer == 0: k.srd(40, 4, 0, XB)
    else: k.srd(40, 12, WS_X2, XB)
    k.srd(44, 12, WS_X1 if layer == 0 else WS_X3, XB)
    k('v_lshl_add_u32 v8, v2, 3, v4')
    k('v_add_u32 v8, s25, v8')
    k('v_mov_b32 v9, 0x%x' % OOB)
    k('v_cmp_gt_u32 vcc, 2, v2')
    k('v_cndmask_b32 v9, v9, v8, vcc')
    XR = 20
    for i in range(5):
        k('buffer_load_dwordx2 %s, v%d, s[40:43], 0 offen offset:%d' % (vq(XR + 2 * i, 2), 8 if i < 4 else 9, 32 * i))
    k('v_lshlrev_b32 v10, 1, v3')
    k('v_and_b32 v10, 15, v10')
    k('v_lshrrev_b32 v11, 3, v3')
    k('v_add_u32 v10, v10, v11')
    k('v_mul_u32_u24 v10, 48, v10')
    k('v_lshlrev_b32 v11, 4, v2')
    k('v_cmp_eq_u32 vcc, 3, v2')
    k('v_mov_b32 v12, 0')
    k('v_cndmask_b32 v11, v11, v12, vcc')
    k('v_add_u32 v10, v10, v11')
    k('v_and_b32 v12, 3, v3')
    k('v_min_u32 v12, 2, v12')
    k('v_add_u32 v12, 16, v12')
    k('v_mul_u32_u24 v12, 48, v12')
    k('v_add_u32 v11, v12, v11')
    k('v_lshrrev_b32 v12, 2, v3')
    k('v_lshl_add_u32 v13, v2, 2, v12')
    k('v_lshlrev_b32 v14, 1, v13')
    k('v_and_b32 v14, 15, v14')
    k('v_lshrrev_b32 v13, 3, v13')
    k('v_add_u32 v13, v13, v14')
    k('v_mul_u32_u24 v13, 144, v13')
    k('v_and_b32 v14, 3, v3')
    k('v_lshl_add_u32 v13, v14, 3, v13')
    k('v_add_u32 v13, %d, v13' % WOI)
    k('v_add_u32 v15, %d, v13' % (16 * 2592))
    k('v_lshrrev_b32 v16, 1, v12')
    k('v_lshl_add_u32 v16, v16, 2, v2')
    k('v_mul_u32_u24 v16, 18, v16')
    k('v_and_b32 v17, 1, v12')
    k('v_add3_u32 v16, v16, v17, 16')
    k('v_mul_u32_u24 v16, 144, v16')
    k('v_lshl_add_u32 v16, v14, 3, v16')
    k('v_add_u32 v16, %d, v16' % WOI)
    k('v_cmp_eq_u32 s[48:49], 1, v2')
    k('v_cmp_eq_u32 s[50:51], 2, v2')
    k('v_cmp_eq_u32 s[52:53], 3, v2')
    k('s_mov_b32 s29, 0xffff0000')
    k.wait_vm_seq(last_dma)
    k('s_waitcnt lgkmcnt(0)')
    k('s_barrier')
    ACC = 32; AF = 64; DD = 112; WF = 144; OQ = 184; PP = 192; LQ = 196; T = 204
    def a_reads(p):
        for j in range(2):
            h = 2 * p + j
            s = AF + 16 * (p % 3) + 8 * j
            k('ds_read_b128 %s, v10 offset:%d' % (vq(s), KVB + h * 912))
            k('ds_read_b128 %s, v11 offset:%d' % (vq(s + 4), KVB + h * 912))
    def w_reads(p):
        for i in range(5):
            d = WF + 20 * (p % 2) + 4 * i
            for j in range(2):
                if p < 16:
                    h = 2 * p + j
                    base, off = (13, h * 2592) if h < 16 else (15, (h - 16) * 2592)
                else:
                    base, off = 16, (p - 16) * 41472 + j * 20736
                k('ds_read_b64_tr_b16 %s, v%d offset:%d' % (vq(d + 2 * j, 2), base, off + 32 * i))
    def b_mfma(p):
        for j in range(2):
            h = 2 * p + j
            s = AF + 16 * (p % 3) + 8 * j
            d = DD + 16 * (p % 2) + 8 * j
            k('v_mfma_f32_16x16x32_bf16 %s, %s, %s, 0' % (vq(d + 4), vq(s + 4), aq(4 * h)))
            k('v_mfma_f32_16x16x32_bf16 %s, %s, %s, 0' % (vq(d), vq(s), aq(4 * h)))
    def c_valu(p):
        o = OQ + 4 * (p % 2)
        ds = [DD + 16 * (p % 2) + 8 * j for j in range(2)]
        for j in range(2): k('v_add_f32 v%d, %s, v%d' % (T + j, f32(1e-6), ds[j] + 6))
        for j in range(2): k('v_rcp_f32 v%d, v%d' % (T + j, T + j))
        for j in range(2):
            for r in (4, 5, 0, 1, 2, 3): k('v_mul_f32 v%d, v%d, v%d' % (ds[j] + r, ds[j] + r, T + j))
        for j in range(2):
            h = 2 * p + j
            k('v_cvt_pk_bf16_f32 v%d, v%d, v%d' % (o + 2 * j, ds[j], ds[j] + 1))
            k('v_cvt_pk_bf16_f32 v%d, v%d, v%d' % (o + 2 * j + 1, ds[j] + 2, ds[j] + 3))
            k('v_cvt_pk_bf16_f32 v%d, v%d, v%d' % (PP + h % 4, ds[j] + 4, ds[j] + 5))
        if p % 2 == 1:
            m = p // 2
            k('v_cndmask_b32 v%d, v%d, v%d, s[48:49]' % (LQ + m, PP, PP + 1))
            k('v_cndmask_b32 v%d, v%d, v%d, s[50:51]' % (LQ + m, LQ + m, PP + 2))
            k('v_cndmask_b32 v%d, v%d, v%d, s[52:53]' % (LQ + m, LQ + m, PP + 3))
    def d_mfma(p):
        o = OQ + 4 * (p % 2) if p < 16 else LQ + 4 * (p - 16)
        for i in range(5):
            a = vq(ACC + 4 * i)
            k('v_mfma_f32_16x16x32_bf16 %s, %s, %s, %s' % (a, vq(WF + 20 * (p % 2) + 4 * i), vq(o), a if p else '0'))
    a_reads(0); a_reads(1)
    b_mfma(0)
    for p in range(16):
        if p + 2 < 16: a_reads(p + 2)
        w_reads(p)
        if p + 1 < 16: b_mfma(p + 1)
        if p >= 1: d_mfma(p - 1)
        c_valu(p)
    w_reads(16)
    d_mfma(15)
    w_reads(17)
    d_mfma(16)
    d_mfma(17)
    for i in range(5):
        a = ACC + 4 * i; x = XR + 2 * i
        for j in range(2):
            k('v_lshlrev_b32 v%d, 16, v%d' % (T + 2 * j, x + j))
            k('v_and_b32 v%d, s29, v%d' % (T + 2 * j + 1, x + j))
        for r in range(4): k('v_add_f32 v%d, v%d, v%d' % (T + r, T + r, a + r))
        k('v_cvt_pk_bf16_f32 v%d, v%d, v%d' % (x, T, T + 1))
        k('v_cvt_pk_bf16_f32 v%d, v%d, v%d' % (x + 1, T + 2, T + 3))
        k('buffer_store_dwordx2 %s, v%d, s[44:47], 0 offen offset:%d' % (vq(x, 2), 8 if i < 4 else 9, 32 * i))
    k.end()
    return k

GELU_A = -2.0 * math.sqrt(2.0 / math.pi) * LOG2E
GELU_B = GELU_A * 0.044715

def cost(t):
    mn = t.split()[0]
    return 2.0 if mn in TRANS else 1.0

def gen_mlp(layer, fr=(0.65, 0.65, 0.85, 0.85)):
    k = K('mlp%d_kernel' % layer, 256, 256, 147456, 512, 256)
    k.begin()
    k('s_load_dwordx2 s[4:5], s[0:1], %d' % KA_B1)
    k('s_load_dwordx2 s[12:13], s[0:1], %d' % KA_WS)
    k.ids(20)
    k('s_and_b32 s21, s2, 7')
    k('s_lshr_b32 s22, s2, 3')
    k('s_lshl_b32 s23, s22, 6')
    k('s_lshl_b32 s24, s20, 4')
    k('s_add_u32 s23, s23, s24')
    k('v_add_u32 v4, s23, v3')
    k('v_mul_u32_u24 v4, 1152, v4')
    k('v_lshl_add_u32 v4, v2, 4, v4')
    k('v_lshlrev_b32 v5, 4, v1')
    k('s_lshl_b32 s25, s21, 2')
    k('s_add_u32 s25, s25, s20')
    k('s_mul_i32 s25, s25, %d' % STREAM_WAVE)
    k('s_waitcnt lgkmcnt(0)')
    k.srd(8, 12, WS_X1 if layer == 0 else WS_X3, XB)
    X = 32
    for kk in range(18):
        k('buffer_load_dwordx4 %s, v4, s[8:11], 0 offen offset:%d' % (vq(X + 4 * kk), 64 * kk))
    k.srd(36, 4, 0, 4608 * 2)
    k('s_mul_i32 s26, s21, 1152')
    k('s_mul_i32 s27, s20, 96')
    k('s_add_u32 s26, s26, s27')
    k('v_lshlrev_b32 v6, 3, v2')
    BT = 176
    for q in range(3):
        for i in range(3):
            k('buffer_load_dwordx2 %s, v6, s[36:39], s26 offen offset:%d' % (vq(BT + 2 * (3 * q + i), 2), 384 * q + 32 * i))
    k.srd(16, 12, WS_STREAM, STREAM_WAVE, soff=25)
    RING = 144; NR = 27; NFR = 324
    def wload(f):
        if f % 4 == 0: k('s_mov_b32 s28, %d' % (f * 1024))
        k('buffer_load_dwordx4 %s, v5, s[16:19], s28 offen offset:%d' % (aq(RING + 4 * (f % NR)), (f % 4) * 1024))
    for f in range(NR): wload(f)
    k('v_add_u32 v7, 36864, v5')
    k('v_add_u32 v8, 73728, v5')
    k('v_add_u32 v9, 110592, v5')
    k('s_mul_i32 s27, s20, 3')
    for i in range(3):
        k('s_add_u32 s30, s27, %d' % i)
        k('s_lshr_b32 s31, s30, 1')
        k('s_lshl_b32 s31, s31, 12')
        k('s_and_b32 s30, s30, 1')
        k('s_lshl_b32 s30, s30, 3')
        k('s_add_u32 s30, s30, s31')
        k('v_add_u32 v%d, s30, v8' % (10 + i))
    k('s_lshl_b32 s30, s20, 10')
    k('v_add_u32 v13, s30, v5')
    k('v_add_u32 v14, 36864, v13')
    k('s_mul_i32 s30, s21, %d' % XB)
    k('s_mul_i32 s31, s22, %d' % (64 * 1152))
    k('s_add_u32 s30, s30, s31')
    k.srd(40, 12, WS_PART, 64 * 1152, soff=30)
    k('v_mul_u32_u24 v15, 1152, v3')
    k('s_mul_i32 s30, s20, 288')
    k('v_add_u32 v15, s30, v15')
    k('v_lshl_add_u32 v16, v2, 3, v15')
    k('v_lshl_add_u32 v15, v2, 4, v15')
    for t in range(1, 4): k('s_mov_b32 s%d, %d' % (44 + t, 18432 * t))
    k('s_mov_b32 s44, 0')
    k('v_mov_b32 v17, %s' % f32(GELU_A))
    k('v_mov_b32 v18, %s' % f32(GELU_B))
    k('s_mov_b32 s29, 0xffff0000')
    ln_stats(k, X, 18, 244, 248, 252, 28, True)
    BIAS = 208
    for kk in range(18):
        ln_apply(k, X + 4 * kk, 28, 244, False, 29)
        k('ds_write_b128 v%d, %s offset:%d' % (13 if kk < 9 else 14, vq(X + 4 * kk), (kk % 9) * 4096))
    for n in range(9):
        for j in range(2):
            k('v_lshlrev_b32 v%d, 16, v%d' % (BIAS + 4 * n + 2 * j, BT + 2 * n + j))
            k('v_and_b32 v%d, s29, v%d' % (BIAS + 4 * n + 2 * j + 1, BT + 2 * n + j))
    k('s_waitcnt lgkmcnt(0)')
    k('s_barrier')
    G1 = 32; BF = 176; GT = 244
    def y_read(kk, t, dst):
        return 'ds_read_b128 %s, v%d offset:%d' % (vq(dst), 5 if kk < 9 else 7, (kk % 9) * 4096 + t * 1024)
    def h_read(kg, t, dst):
        return 'ds_read_b128 %s, v%d offset:%d' % (vq(dst), 8 if kg < 9 else 9, (kg % 9) * 4096 + t * 1024)
    def gelu_list(q):
        out = []
        for i in range(3):
            for t in range(4):
                a = G1 + 48 * q + 16 * i + 4 * t
                n = (i * 4 + t) % 2
                tm = GT + 4 * n; pk = GT + 8 + 2 * n
                R = range(4)
                out += ['v_mul_f32 v%d, v%d, v%d' % (tm + r, a + r, a + r) for r in R]
                out += ['v_fma_f32 v%d, v%d, v18, v17' % (tm + r, tm + r) for r in R]
                out += ['v_mul_f32 v%d, v%d, v%d' % (tm + r, tm + r, a + r) for r in R]
                out += ['v_exp_f32 v%d, v%d' % (tm + r, tm + r) for r in R]
                out += ['v_add_f32 v%d, 1.0, v%d' % (tm + r, tm + r) for r in R]
                out += ['v_rcp_f32 v%d, v%d' % (tm + r, tm + r) for r in R]
                out += ['v_mul_f32 v%d, v%d, v%d' % (tm + r, tm + r, a + r) for r in R]
                out += ['v_cvt_pk_bf16_f32 v%d, v%d, v%d' % (pk, tm, tm + 1), 'v_cvt_pk_bf16_f32 v%d, v%d, v%d' % (pk + 1, tm + 2, tm + 3)]
                out += ['ds_write_b64 v%d, %s offset:%d' % (10 + i, vq(pk, 2), q * 24576 + t * 1024)]
        return out
    gq = []
    gcost = sum(cost(t) for t in gelu_list(0))
    state = dict(budget=0.0, lastw={})
    def fill(rate):
        state['budget'] += rate
        while gq and state['budget'] >= cost(gq[0][1]) * 0.5:
            q, t = gq.pop(0)
            state['budget'] -= cost(t)
            s = k.one(t)
            if t.startswith('ds_write'): state['lastw'][q] = s
        if not gq: state['budget'] = min(state['budget'], 0.0)
    def flush(q):
        while gq and gq[0][0] <= q:
            qq, t = gq.pop(0)
            s = k.one(t)
            if t.startswith('ds_write'): state['lastw'][qq] = s
        k.wait_lg_seq(state['lastw'][q])
        k('s_barrier')
    steps = []
    for q in range(3):
        for kk in range(18): steps.append(('g1', q, kk))
    for q in range(2):
        for kp in range(6): steps.append(('g2', q, kp))
    for t in range(4): k(y_read(0, t, BF + 4 * t))
    f = 0
    H2 = 32
    for si, (kind, q, kk) in enumerate(steps):
        stage = q if kind == 'g1' else 3 + q
        if kind == 'g1' and kk == 0 and q >= 1: gq.extend((q - 1, t) for t in gelu_list(q - 1))
        if kind == 'g2' and kk == 0 and q == 0: gq.extend((2, t) for t in gelu_list(2))
        rate = 0.0 if stage == 0 else fr[stage - 1] * gcost / 216.0
        b = BF + 16 * (si % 2); bn = BF + 16 * ((si + 1) % 2)
        nxt = []
        if si + 1 < len(steps):
            k2, q2, kk2 = steps[si + 1]
            if k2 == 'g2' and kk2 == 0: flush(q2)
            nxt = [y_read(kk2, t, bn + 4 * t) if k2 == 'g1' else h_read(6 * q2 + kk2, t, bn + 4 * t) for t in range(4)]
        else:
            flush(2)
            nxt = [h_read(12 + kp, t, H2 + 16 * kp + 4 * t) for kp in range(6) for t in range(4)]
        nt_n = 3 if kind == 'g1' else 9
        cnt = 0
        for i in range(nt_n):
            w = aq(RING + 4 * (f % NR))
            for t in range(4):
                if kind == 'g1':
                    a = vq(G1 + 48 * q + 16 * i + 4 * t)
                    c = a if kk else vq(BIAS + 4 * (3 * q + i))
                else:
                    a = aq(16 * i + 4 * t)
                    c = a if (q or kk) else '0'
                k('v_mfma_f32_16x16x32_bf16 %s, %s, %s, %s' % (a, w, vq(b + 4 * t), c))
                if nxt and (cnt % 2 == 0 or len(nxt) > 4): k(nxt.pop(0))
                cnt += 1
                if t == 3 and f + NR < NFR: wload(f + NR)
                fill(rate)
            f += 1
        assert not nxt
    assert not gq and f == 270
    ET = 128
    ep = []
    def epi_list(nts):
        out = []
        for t in range(4):
            tm = ET + 12 * (t % 4)
            n = 0
            for nt in nts:
                for r in range(4):
                    out.append('v_accvgpr_read_b32 v%d, a%d' % (tm + n, 16 * nt + 4 * t + r)); n += 1
            for j in range(n // 2):
                out.append('v_cvt_pk_bf16_f32 v%d, v%d, v%d' % (tm + 8 + j, tm + 2 * j, tm + 2 * j + 1))
            if len(nts) == 2:
                out.append('buffer_store_dwordx4 %s, v15, s[40:43], s%d offen offset:%d' % (vq(tm + 8), 44 + t, 32 * nts[0]))
            else:
                out.append('buffer_store_dwordx2 %s, v16, s[40:43], s%d offen offset:256' % (vq(tm + 8, 2), 44 + t))
        return out
    for nt in range(9):
        cnt = 0
        for kp in range(6):
            w = aq(RING + 4 * (f % NR))
            for t in range(4):
                a = aq(16 * nt + 4 * t)
                k('v_mfma_f32_16x16x32_bf16 %s, %s, %s, %s' % (a, w, vq(H2 + 16 * kp + 4 * t), a))
                if t == 3 and f + NR < NFR: wload(f + NR)
                cnt += 1
                if cnt > 3:
                    for _ in range(2):
                        if ep: k(ep.pop(0))
            f += 1
        if nt % 2 == 1: ep.extend(epi_list([nt - 1, nt]))
    ep.extend(epi_list([8]))
    for t in ep: k(t)
    assert f == NFR
    k.end()
    return k

def gen_red(layer):
    k = K('red%d_kernel' % layer, 576, 256, 0, 64, 64)
    k.begin()
    k('s_load_dwordx2 s[4:5], s[0:1], %d' % KA_B2)
    k('s_load_dwordx2 s[6:7], s[0:1], %d' % KA_OUT)
    k('s_load_dwordx2 s[12:13], s[0:1], %d' % KA_WS)
    k('s_lshl_b32 s3, s2, 8')
    k('v_add_u32 v1, s3, v0')
    k('s_mov_b32 s20, 59652324')
    k('v_mul_hi_u32 v2, v1, s20')
    k('v_mul_u32_u24 v2, 72, v2')
    k('v_sub_u32 v2, v1, v2')
    k('v_lshlrev_b32 v2, 4, v2')
    k('v_lshlrev_b32 v1, 4, v1')
    k('s_waitcnt lgkmcnt(0)')
    k.srd(8, 12, WS_PART, 8 * XB)
    for c in range(8):
        k('s_mov_b32 s21, %d' % (c * XB))
        k('buffer_load_dwordx4 %s, v1, s[8:11], s21 offen' % vq(8 + 4 * c))
    k.srd(16, 12, WS_X1 if layer == 0 else WS_X3, XB)
    k('buffer_load_dwordx4 %s, v1, s[16:19], 0 offen' % vq(40))
    k.srd(24, 4, 0, 1152)
    k('buffer_load_dwordx4 %s, v2, s[24:27], 0 offen' % vq(44))
    if layer == 0: k.srd(28, 12, WS_X2, XB)
    else: k.srd(28, 6, 0, XB)
    k('s_mov_b32 s32, 0xffff0000')
    S = 48; T = 56
    for n in range(10):
        x = 8 + 4 * n
        d = S if n == 0 else T
        for i in range(4):
            k('v_lshlrev_b32 v%d, 16, v%d' % (d + 2 * i, x + i))
            k('v_and_b32 v%d, s32, v%d' % (d + 2 * i + 1, x + i))
        if n:
            for i in range(8): k('v_add_f32 v%d, v%d, v%d' % (S + i, S + i, T + i))
    for i in range(4): k('v_cvt_pk_bf16_f32 v%d, v%d, v%d' % (4 + i, S + 2 * i, S + 2 * i + 1))
    k('buffer_store_dwordx4 v[4:7], v1, s[28:31], 0 offen')
    k.end()
    return k

def build(kernels, order=None):
    order = order or kernels
    out = []
    for k in order: out.append(k.launch_line())
    out.append('.amdgcn_target "amdgcn-amd-amdhsa--gfx950"')
    out.append('.text')
    for k in kernels: out.append(k.text())
    out.append('.section .rodata,"a"')
    for k in kernels: out.append(k.desc())
    return '\n'.join(out)

if __name__ == '__main__':
    ks = [gen_prep()]
    for L in range(2):
        ks += [gen_qkv(L), gen_attn(L), gen_mlp(L), gen_red(L)]
    path = sys.argv[1] if len(sys.argv) > 1 else 'cdna_kernels/%s.s' % NAME
    open(path, 'w').write(build(ks))
    for k in ks: print(k.label_name, 'lines', len(k.lines), 'nops', k.n_nops)
```

```python
import numpy as np
XB = 2048 * 576 * 2
TILE = 18432
WS_STREAM = 0
STREAM_WAVE = 324 * 1024
WS_AUG1 = 0xA20000
WS_AUGQ = 0xA40000
WS_WQS = 0xA50000
WQS_WAVE = 54 * 1024
WS_WQL = 0xC10000
WQL_C = 28 * 1024
WS_WOS = 0xC50000
WOS_C = 84 * 1024
WS_XA = 0xD00000
WS_XBUF = 0xF40000
WS_STA = 0x1180000
WS_STB = 0x11A0000
WS_PQM = 0x11C0000
WS_PQL = 0x13C0000
WS_KVT = 0x1400000
KVH = 1408
KVT_BYTES = 32 * KVH
WS_PART = 0x1410000
WS_END = WS_PART + 8 * XB
WS_STAMP = 0x8000000

def kcol(j, g, e):
    return 72 * (j // 2) + 32 * (j % 2) + 8 * g + e if j < 16 else 72 * (4 * (j - 16) + g) + 64 + e
def ocol(w, tile, n):
    if tile < 8: return kcol(4 * w + tile // 2, n // 4, 4 * (tile % 2) + n % 4)
    return kcol(16 + w // 2, n // 4, 4 * (w % 2) + n % 4)
S1 = [0, 1, 2, 3, 8]
def w2_index(kg, tile):
    if tile in S1: return 162 + 5 * kg + S1.index(tile)
    return 252 + 4 * kg + (tile - 4)
def krow_wo(p, g, s):
    if p < 16: return 18 * (2 * p + s // 4) + 4 * g + s % 4
    m = 4 * (p - 16) + s // 2
    return 18 * (4 * m + g) + 16 + s % 2
def ccol_wo(c, tile, n):
    if tile < 4: return kcol(2 * c + tile // 2, n // 4, 4 * (tile % 2) + n % 4)
    return 72 * c + 64 + n

KC = np.array([[[kcol(j, g, e) for e in range(8)] for g in range(4)] for j in range(18)])

def to_xf(x):
    x = x.reshape(128, 16, 576)
    return x[:, :, KC].transpose(0, 2, 3, 1, 4).reshape(128, 18, 64, 8)
def from_xf(f):
    f = f.reshape(128, 18, 4, 16, 8).transpose(0, 3, 1, 2, 4).reshape(128, 16, 576)
    out = np.empty_like(f)
    out[:, :, KC.reshape(-1)] = f
    return out.reshape(2048, 576)
def from_part(f):
    f = f.reshape(128, 18 * 512).copy()
    s = f[:, 16 * 512:].reshape(128, 2, 2, 64, 4).transpose(0, 1, 3, 2, 4).reshape(128, 1024)
    f[:, 16 * 512:] = s
    return from_xf(f)
def frag(W, rows, cols):
    return W[rows[:, None, :], np.asarray(cols)[None, :, None]].reshape(64, 8)
```

```python
import sys, math, struct
from asmlib import *
from lay import *

NAME = 'interleave_layers__linear_attn_block__mixer_channel_mlp__prompt'
KA_X, KA_WQKV, KA_WO, KA_W1, KA_B1, KA_W2, KA_B2, KA_OUT, KA_DBG, KA_WS = 0, 8, 16, 32, 40, 48, 56, 64, 72, 80
OOB = 0x80000000
STAMPS = False
LOG2E = 1.4426950408889634

def f32(x):
    return '0x%08x' % struct.unpack('<I', struct.pack('<f', x))[0]

class K(Emitter):
    def __init__(self, label, grid, block, lds, vgpr, accum, sgpr=96):
        super().__init__()
        self.label_name = label; self.grid = grid; self.block = block; self.lds = lds
        self.vgpr = vgpr; self.accum = accum; self.sgpr = sgpr
        self.nst = 0
    def L(self, s):
        return '.L_%s_%s' % (self.label_name, s)
    def begin(self):
        self.raw('.globl %s' % self.label_name)
        self.raw('.p2align 8')
        self.raw('.type %s,@function' % self.label_name)
        self.label(self.label_name)
        self('s_cmp_ge_u32 s2, %d' % self.grid)
        self('s_cbranch_scc1 %s' % self.L('end'))
        if STAMPS:
            self('s_memrealtime s[92:93]')
            self('s_load_dwordx2 s[90:91], s[0:1], %d' % KA_DBG)
        self.stamp()
    def stamp(self):
        if not STAMPS: return
        self('s_memtime s[%d:%d]' % (64 + 2 * self.nst, 65 + 2 * self.nst))
        self.nst += 1
        assert self.nst <= 13
    def end(self):
        self.label(self.L('fin'))
        self.reset_state()
        if STAMPS and self.nst:
            self.stamp()
            self('s_waitcnt vmcnt(0) lgkmcnt(0)')
            self('s_memtime s[62:63]')
            self('s_memrealtime s[94:95]')
            self('v_lshrrev_b32 v3, 6, v0')
            self('s_nop 1')
            self('v_readfirstlane_b32 s61, v3')
            self('s_waitcnt lgkmcnt(0)')
            self('s_bfe_u32 s60, s90, 0x40009')
            self('s_lshl_b32 s60, s60, 19')
            self.srd(56, 12, WS_STAMP, 0x80000, soff=60)
            self('s_lshl_b32 s60, s2, 2')
            self('s_add_u32 s60, s60, s61')
            self('s_lshl_b32 s60, s60, 7')
            self('v_mov_b32 v1, 0')
            for i in range(self.nst):
                self('v_mov_b32 v2, s%d' % (64 + 2 * i))
                self('buffer_store_dword v2, v1, s[56:59], s60 offen offset:%d' % (4 * i))
            self('v_mov_b32 v2, s62')
            self('buffer_store_dword v2, v1, s[56:59], s60 offen offset:%d' % (4 * self.nst))
            self('v_mov_b32 v2, s94')
            self('buffer_store_dword v2, v1, s[56:59], s60 offen offset:124')
            self('v_mov_b32 v2, s92')
            self('buffer_store_dword v2, v1, s[56:59], s60 offen offset:120')
        self.label(self.L('end'))
        self('s_endpgm')
    def desc(self):
        return '\n'.join(['.p2align 6', '.amdhsa_kernel %s' % self.label_name,
            '  .amdhsa_next_free_vgpr %d' % self.vgpr, '  .amdhsa_next_free_sgpr %d' % self.sgpr,
            '  .amdhsa_accum_offset %d' % self.accum, '  .amdhsa_group_segment_fixed_size 0',
            '  .amdhsa_kernarg_size 88', '  .amdhsa_user_sgpr_count 2',
            '  .amdhsa_user_sgpr_kernarg_segment_ptr 1', '  .amdhsa_system_sgpr_workgroup_id_x 1',
            '.end_amdhsa_kernel']) + '\n'
    def launch_line(self):
        return '; @launch kernel=%s grid=(%d,1,1) block=(%d,1,1) lds=%d' % (self.label_name, self.grid, self.block, self.lds)
    def srd(self, d, base, off, nbytes, soff=None):
        if off:
            self('s_add_u32 s%d, s%d, 0x%x' % (d, base, off))
            self('s_addc_u32 s%d, s%d, 0' % (d + 1, base + 1))
        else:
            self('s_mov_b32 s%d, s%d' % (d, base))
            self('s_mov_b32 s%d, s%d' % (d + 1, base + 1))
        if soff is not None:
            self('s_add_u32 s%d, s%d, s%d' % (d, d, soff))
            self('s_addc_u32 s%d, s%d, 0' % (d + 1, d + 1))
        self('s_mov_b32 s%d, 0x%x' % (d + 2, nbytes))
        self('s_mov_b32 s%d, 0x20000' % (d + 3))
    def ids(self, swave):
        self('v_lshrrev_b32 v4, 6, v0')
        self('v_and_b32 v1, 63, v0')
        self('v_readfirstlane_b32 s%d, v4' % swave)
        self('v_lshrrev_b32 v2, 4, v1')
        self('v_and_b32 v3, 15, v1')
    def sel(self, dst, cond, vtrue, vfalse):
        self('%s vcc, %s' % cond)
        self('v_cndmask_b32 v%d, %s, %s, vcc' % (dst, vfalse, vtrue))

MAPS = dict(qkv='4x2', att='4x2', mlp='2x4', red='c')
def decode(k, mode):
    if mode == 'c':
        k('s_and_b32 s21, s2, 7')
        k('s_lshr_b32 s22, s2, 3')
    elif mode == 'r':
        k('s_bfe_u32 s21, s2, 0x30003')
        k('s_and_b32 s22, s2, 7')
        k('s_lshl_b32 s22, s22, 2')
        k('s_lshr_b32 s23, s2, 6')
        k('s_add_u32 s22, s22, s23')
    elif mode == '2x4':
        k('s_and_b32 s21, s2, 6')
        k('s_bfe_u32 s23, s2, 0x10003')
        k('s_add_u32 s21, s21, s23')
        k('s_and_b32 s22, s2, 1')
        k('s_lshl_b32 s22, s22, 4')
        k('s_lshr_b32 s23, s2, 4')
        k('s_add_u32 s22, s22, s23')
    elif mode == '4x2':
        k('s_and_b32 s21, s2, 4')
        k('s_bfe_u32 s23, s2, 0x20003')
        k('s_add_u32 s21, s21, s23')
        k('s_and_b32 s22, s2, 3')
        k('s_lshl_b32 s22, s22, 3')
        k('s_lshr_b32 s23, s2, 5')
        k('s_add_u32 s22, s22, s23')

def xlane_sum(k, a, t):
    k('v_mov_b32 v%d, v%d' % (t, a))
    k('v_permlane32_swap_b32 v%d, v%d' % (a, t))
    k('v_add_f32 v%d, v%d, v%d' % (a, a, t))
    k('v_mov_b32 v%d, v%d' % (t, a))
    k('v_permlane16_swap_b32 v%d, v%d' % (a, t))
    k('v_add_f32 v%d, v%d, v%d' % (a, a, t))

PR_A, PR_B, PR_C, PR_D, PR_E1, PR_E2, PR_F, PR_N = 0, 144, 288, 360, 387, 499, 539, 571

def gen_prep():
    k = K('prep_kernel', PR_N, 256, 36864, 96, 96)
    k.begin()
    k('s_load_dwordx2 s[12:13], s[0:1], %d' % KA_WS)
    k.ids(20)
    for lab, lo in (('F', PR_F), ('E2', PR_E2), ('E1', PR_E1), ('D', PR_D), ('C', PR_C), ('B', PR_B)):
        k('s_cmp_ge_u32 s2, %d' % lo)
        k('s_cbranch_scc1 %s' % k.L(lab))
    k('s_load_dwordx2 s[4:5], s[0:1], %d' % KA_W1)
    k('s_lshr_b32 s22, s2, 3')
    k('s_and_b32 s23, s2, 7')
    k('s_lshr_b32 s24, s22, 1')
    k('s_mul_i32 s24, s24, 72')
    k('s_and_b32 s25, s22, 1')
    k('s_lshl_b32 s26, s25, 5')
    k('s_add_u32 s24, s24, s26')
    k('s_mul_i32 s25, s25, 288')
    k('s_add_u32 s25, s25, 64')
    k('s_cmp_lt_u32 s22, 16')
    k('s_cselect_b32 s24, s24, s25')
    k('s_cselect_b32 s27, 0, %d' % (64 * 9216))
    k('s_mul_i32 s24, s24, 9216')
    k('s_mul_i32 s25, s23, 1152')
    k('s_add_u32 s24, s24, s25')
    k('s_mov_b32 s26, 8064')
    k('s_waitcnt lgkmcnt(0)')
    k.srd(8, 4, 0, 576 * 9216)
    k('s_branch %s' % k.L('j1'))
    k.label(k.L('B'))
    k.reset_state()
    k('s_load_dwordx2 s[4:5], s[0:1], %d' % KA_W2)
    k('s_sub_u32 s27, s2, %d' % PR_B)
    k('s_mul_i32 s24, s27, 36864')
    k('s_mul_i32 s23, s27, 3641')
    k('s_lshr_b32 s23, s23, 16')
    k('s_mul_i32 s25, s23, 18')
    k('s_sub_u32 s22, s27, s25')
    k('s_mov_b32 s26, 0')
    k('s_mov_b32 s27, 0')
    k('s_waitcnt lgkmcnt(0)')
    k.srd(8, 4, 0, 4608 * 1152)
    k.label(k.L('j1'))
    k.reset_state()
    k('s_mul_i32 s28, s20, 576')
    k('v_add_u32 v5, s28, v1')
    k('s_mul_i32 s29, s20, 9216')
    k('s_mov_b32 s30, 14564')
    for t in range(9):
        k('v_mul_lo_u32 v6, v5, s30')
        k('v_lshrrev_b32 v6, 20, v6')
        k('v_lshrrev_b32 v7, 3, v6')
        k('v_mul_lo_u32 v6, v6, s26')
        k('v_mul_lo_u32 v7, v7, s27')
        k('v_lshl_add_u32 v6, v5, 4, v6')
        k('v_add_u32 v6, v6, v7')
        k('s_add_u32 m0, s29, %d' % (t * 1024))
        k('buffer_load_dwordx4 v6, s[8:11], s24 offen lds')
        k('v_add_u32 v5, 64, v5')
    k('s_lshl_b32 s31, s23, 2')
    k('s_add_u32 s31, s31, s20')
    k('s_mul_i32 s31, s31, %d' % STREAM_WAVE)
    k.srd(16, 12, WS_STREAM, STREAM_WAVE, soff=31)
    k('v_lshlrev_b32 v7, 4, v1')
    k('v_lshrrev_b32 v8, 2, v3')
    k('v_and_b32 v9, 3, v3')
    k('s_waitcnt vmcnt(0)')
    k('s_barrier')
    k('s_cmp_ge_u32 s2, %d' % PR_B)
    k('s_cbranch_scc1 %s' % k.L('t2'))
    k('v_lshl_add_u32 v10, v2, 3, v8')
    k('v_mul_u32_u24 v10, 1152, v10')
    k('v_lshl_add_u32 v10, v9, 3, v10')
    k('s_mul_i32 s32, s20, 96')
    k('v_add_u32 v10, s32, v10')
    k('s_mul_i32 s33, s22, 3072')
    for q in range(3):
        for i in range(3):
            d = 16 + 4 * (3 * q + i)
            k('ds_read_b64_tr_b16 %s, v10 offset:%d' % (vq(d, 2), 384 * q + 32 * i))
            k('ds_read_b64_tr_b16 %s, v10 offset:%d' % (vq(d + 2, 2), 384 * q + 32 * i + 4608))
        for i in range(3):
            d = 16 + 4 * (3 * q + i)
            k('buffer_store_dwordx4 %s, v7, s[16:19], s33 offen offset:%d' % (vq(d), 1024 * i))
        k('s_add_u32 s33, s33, %d' % (54 * 1024))
    k('s_branch %s' % k.L('fin'))
    k.label(k.L('t2'))
    k.reset_state()
    k('v_lshl_add_u32 v10, v2, 2, v8')
    k('v_mul_u32_u24 v10, 1152, v10')
    k('s_lshr_b32 s32, s20, 1')
    k('s_mul_i32 s32, s32, 576')
    k('s_and_b32 s33, s20, 1')
    k('s_lshl_b32 s33, s33, 3')
    k('s_add_u32 s32, s32, s33')
    k('s_add_u32 s32, s32, 128')
    k('v_mul_u32_u24 v11, 144, v9')
    k('v_add3_u32 v11, v11, v10, s32')
    k('s_mul_i32 s32, s20, 288')
    k('v_add_u32 v10, s32, v10')
    k('v_lshl_add_u32 v10, v9, 4, v10')
    k('s_mul_i32 s33, s22, 5120')
    k('s_add_u32 s33, s33, %d' % (162 * 1024))
    k('s_lshl_b32 s34, s22, 12')
    k('s_add_u32 s34, s34, %d' % (252 * 1024))
    k('s_add_u32 s35, s33, 4096')
    for nt in range(9):
        d = 16 + 4 * nt
        p = nt // 2
        a, o = (10, 144 * (p // 2) + 64 * (p % 2) + 8 * (nt % 2)) if nt < 8 else (11, 0)
        k('ds_read_b64_tr_b16 %s, v%d offset:%d' % (vq(d, 2), a, o))
        k('ds_read_b64_tr_b16 %s, v%d offset:%d' % (vq(d + 2, 2), a, o + 18432))
    for nt in range(9):
        d = 16 + 4 * nt
        if nt < 4: k('buffer_store_dwordx4 %s, v7, s[16:19], s33 offen offset:%d' % (vq(d), 1024 * nt))
        elif nt < 8: k('buffer_store_dwordx4 %s, v7, s[16:19], s34 offen offset:%d' % (vq(d), 1024 * (nt - 4)))
        else: k('buffer_store_dwordx4 %s, v7, s[16:19], s35 offen' % vq(d))
    k('s_branch %s' % k.L('fin'))
    k.label(k.L('C'))
    k.reset_state()
    k('s_load_dwordx2 s[4:5], s[0:1], %d' % KA_W1)
    k('s_load_dwordx2 s[6:7], s[0:1], %d' % KA_B1)
    k('s_sub_u32 s22, s2, %d' % PR_C)
    k('s_mov_b32 s26, 9216')
    k('s_waitcnt lgkmcnt(0)')
    k.srd(8, 4, 0, 576 * 9216)
    k.srd(16, 6, 0, 9216)
    k('s_branch %s' % k.L('j2'))
    k.label(k.L('D'))
    k.reset_state()
    k('s_load_dwordx2 s[4:5], s[0:1], %d' % KA_WQKV)
    k('s_sub_u32 s22, s2, %d' % PR_D)
    k('s_mov_b32 s26, 3456')
    k('s_waitcnt lgkmcnt(0)')
    k.srd(8, 4, 0, 576 * 3456)
    k.srd(16, 4, 0, 0)
    k.label(k.L('j2'))
    k.reset_state()
    k('v_lshrrev_b32 v5, 3, v0')
    k('v_mul_lo_u32 v5, v5, s26')
    k('v_and_b32 v6, 7, v0')
    k('v_lshl_add_u32 v5, v6, 4, v5')
    k('s_lshl_b32 s24, s22, 7')
    k('s_lshl_b32 s25, s26, 5')
    k('s_mov_b32 s27, s24')
    for it in range(18):
        k('buffer_load_dwordx4 %s, v5, s[8:11], s27 offen' % vq(16 + 4 * it))
        if it < 17: k('s_add_u32 s27, s27, s25')
    k('v_lshlrev_b32 v7, 1, v0')
    k('buffer_load_ushort v4, v7, s[16:19], s24 offen')
    k('s_mov_b32 s29, 0xffff0000')
    for it in range(18):
        x = 16 + 4 * it
        for i in range(4):
            if it == 0:
                k('v_lshlrev_b32 v%d, 16, v%d' % (8 + 2 * i, x + i))
                k('v_and_b32 v%d, s29, v%d' % (9 + 2 * i, x + i))
            else:
                k('v_lshlrev_b32 v%d, 16, v%d' % (88 + 2 * (i % 2), x + i))
                k('v_and_b32 v%d, s29, v%d' % (89 + 2 * (i % 2), x + i))
                k('v_add_f32 v%d, v%d, v%d' % (8 + 2 * i, 8 + 2 * i, 88 + 2 * (i % 2)))
                k('v_add_f32 v%d, v%d, v%d' % (9 + 2 * i, 9 + 2 * i, 89 + 2 * (i % 2)))
    k('v_lshlrev_b32 v6, 5, v0')
    k('ds_write_b128 v6, v[8:11]')
    k('ds_write_b128 v6, v[12:15] offset:16')
    k('s_waitcnt lgkmcnt(0)')
    k('s_barrier')
    k('s_cmp_lg_u32 s20, 0')
    k('s_cbranch_scc1 %s' % k.L('fin'))
    k('v_lshlrev_b32 v6, 2, v0')
    for i in range(32): k('ds_read_b32 v%d, v6 offset:%d' % (16 + i, 256 * i))
    for i in range(16): k('v_add_f32 v%d, v%d, v%d' % (16 + i, 16 + i, 32 + i))
    for n in (8, 4, 2, 1):
        for i in range(n): k('v_add_f32 v%d, v%d, v%d' % (16 + i, 16 + i, 16 + n + i))
    k('v_cvt_pk_bf16_f32 v8, v16, v16')
    k('v_and_b32 v17, s29, v8')
    k('v_sub_f32 v17, v16, v17')
    k('v_cvt_pk_bf16_f32 v9, v17, v17')
    k('v_lshl_or_b32 v10, v4, 16, v4')
    k('v_mov_b32 v11, v4')
    k('s_lshl_b32 s24, s22, 6')
    k('v_add_u32 v5, s24, v0')
    k('s_cmp_ge_u32 s2, %d' % PR_D)
    k('s_cbranch_scc1 %s' % k.L('D2'))
    k.srd(16, 12, WS_AUG1, 4608 * 16)
    k('v_lshlrev_b32 v5, 4, v5')
    k('buffer_store_dwordx4 v[8:11], v5, s[16:19], 0 offen')
    k('s_branch %s' % k.L('fin'))
    k.label(k.L('D2'))
    k.reset_state()
    k.srd(16, 12, WS_AUGQ, 8 * 14 * 256)
    k('v_mul_u32_u24 v12, 7282, v5')
    k('v_lshrrev_b32 v12, 22, v12')
    k('v_mul_u32_u24 v13, 576, v12')
    k('v_sub_u32 v13, v5, v13')
    k('v_mul_u32_u24 v14, 3641, v13')
    k('v_lshrrev_b32 v14, 16, v14')
    k('v_mul_u32_u24 v15, 18, v14')
    k('v_sub_u32 v15, v13, v15')
    k('v_and_b32 v16, 3, v14')
    k('v_lshrrev_b32 v14, 2, v14')
    k('v_add_u32 v17, -1, v12')
    k('v_cmp_eq_u32 vcc, 0, v12')
    k('v_mov_b32 v18, 2')
    k('v_cndmask_b32 v18, v17, v18, vcc')
    k('v_mul_u32_u24 v19, 3, v16')
    k('v_add_u32 v18, v18, v19')
    k('v_lshl_add_u32 v18, v18, 4, v15')
    k('v_lshl_add_u32 v19, v16, 1, v15')
    k('v_add_u32 v19, %d, v19' % (13 * 16 - 16))
    k('v_lshl_add_u32 v20, v16, 1, v17')
    k('v_lshl_add_u32 v20, v20, 1, v15')
    k('v_add_u32 v20, %d, v20' % (12 * 16 - 16))
    k('v_cndmask_b32 v19, v20, v19, vcc')
    k('v_cmp_gt_u32 vcc, 16, v15')
    k('v_cndmask_b32 v18, v19, v18, vcc')
    k('v_mul_u32_u24 v14, 224, v14')
    k('v_add_lshl_u32 v5, v14, v18, 4')
    k('buffer_store_dwordx4 v[8:11], v5, s[16:19], 0 offen')
    k('s_branch %s' % k.L('fin'))
    def gather(stride, rows_a, rows_b, srow_a, it_rows, srow_b):
        k('s_mul_i32 s34, s%d, %d' % (srow_a, stride))
        k('s_mul_i32 s35, s%d, %d' % (srow_b, stride))
        for it in range(5):
            for s in range(8):
                r = (rows_a[s] + it_rows * it) if it < 4 else rows_b[s]
                k('s_add_u32 s36, s%d, %d' % (34 if it < 4 else 35, r * stride))
                k('buffer_load_ushort v%d, v%d, s[8:11], s36 offen' % (16 + 8 * it + s, 5 if it < 4 else 6))
        for it in range(5):
            for i in range(4):
                k('v_lshl_or_b32 v%d, v%d, 16, v%d' % (56 + 4 * it + i, 17 + 8 * it + 2 * i, 16 + 8 * it + 2 * i))
            if it < 4:
                k('buffer_store_dwordx4 %s, v7, s[16:19], s30 offen' % vq(56 + 4 * it))
                k('s_add_u32 s30, s30, s31')
            else:
                k('buffer_store_dwordx4 %s, v12, s[16:19], s33 offen' % vq(56 + 4 * it))
        k('s_branch %s' % k.L('fin'))
    k.label(k.L('E1'))
    k.reset_state()
    k('s_load_dwordx2 s[4:5], s[0:1], %d' % KA_WQKV)
    k('s_sub_u32 s22, s2, %d' % PR_E1)
    k('s_mul_i32 s23, s22, 4682')
    k('s_lshr_b32 s23, s23, 16')
    k('s_mul_i32 s24, s23, 14')
    k('s_sub_u32 s22, s22, s24')
    k('s_mul_i32 s24, s23, 72')
    k('v_lshlrev_b32 v7, 4, v1')
    k('s_cmp_ge_u32 s22, 12')
    k('s_cbranch_scc1 %s' % k.L('E1L'))
    k('s_mul_i32 s25, s22, 43')
    k('s_lshr_b32 s25, s25, 7')
    k('s_mul_i32 s26, s25, 3')
    k('s_sub_u32 s26, s22, s26')
    k('s_add_u32 s27, s26, 1')
    k('s_mul_i32 s27, s27, 576')
    k('s_cmp_eq_u32 s26, 2')
    k('s_cselect_b32 s27, 0, s27')
    k('s_cselect_b32 s28, 1, 2')
    k('s_cselect_b32 s29, 36, s26')
    k('s_lshl_b32 s28, s28, 10')
    k('s_lshl_b32 s29, s29, 10')
    k('s_add_u32 s24, s24, s27')
    k('s_mul_i32 s27, s25, 18')
    k('s_add_u32 s24, s24, s27')
    k('v_add_u32 v8, s24, v3')
    k('s_lshl_b32 s27, s23, 2')
    k('s_add_u32 s27, s27, s25')
    k('s_mul_i32 s27, s27, %d' % WQS_WAVE)
    k('s_add_u32 s27, s27, %d' % WS_WQS)
    k('s_branch %s' % k.L('E1J'))
    k.label(k.L('E1L'))
    k.reset_state()
    k('s_mul_i32 s27, s23, %d' % WQL_C)
    k('s_add_u32 s27, s27, %d' % WS_WQL)
    k('v_and_b32 v9, 1, v3')
    k('s_add_u32 s24, s24, 16')
    k('s_cmp_eq_u32 s22, 13')
    k('s_cbranch_scc1 %s' % k.L('E1Q'))
    k('v_lshrrev_b32 v8, 2, v3')
    k('v_mul_u32_u24 v8, 18, v8')
    k('v_bfe_u32 v10, v3, 1, 1')
    k('v_mul_u32_u24 v10, 576, v10')
    k('v_add3_u32 v8, v8, v9, v10')
    k('s_add_u32 s24, s24, 576')
    k('v_add_u32 v8, s24, v8')
    k('s_mov_b32 s28, 1024')
    k('s_mov_b32 s29, 0')
    k('s_branch %s' % k.L('E1J'))
    k.label(k.L('E1Q'))
    k.reset_state()
    k('v_bfe_u32 v8, v3, 1, 2')
    k('v_mul_u32_u24 v8, 18, v8')
    k('v_add3_u32 v8, v8, v9, s24')
    k('s_mov_b32 s28, 512')
    k('s_mov_b32 s29, 18432')
    k('v_lshl_add_u32 v7, v2, 3, v3')
    k('v_lshlrev_b32 v7, 4, v7')
    k('v_mov_b32 v10, 0x%x' % OOB)
    k('v_cmp_gt_u32 vcc, 8, v3')
    k('v_cndmask_b32 v7, v10, v7, vcc')
    k.label(k.L('E1J'))
    k.reset_state()
    k('s_waitcnt lgkmcnt(0)')
    k.srd(8, 4, 0, 576 * 3456)
    k.srd(16, 12, 0, WQS_WAVE, soff=27)
    k('v_mul_u32_u24 v5, %d, v2' % (8 * 3456))
    k('v_lshl_add_u32 v5, v8, 1, v5')
    k('v_mul_u32_u24 v6, %d, v2' % (72 * 3456))
    k('v_lshl_add_u32 v6, v8, 1, v6')
    def common_rows():
        k('s_mul_i32 s30, s20, s28')
        k('s_add_u32 s30, s30, s29')
        k('s_lshl_b32 s31, s28, 2')
        k('s_lshl_b32 s33, s28, 4')
        k('s_add_u32 s33, s33, s30')
        k('v_mov_b32 v12, 0x%x' % OOB)
        k('s_cmp_lt_u32 s20, 2')
        k('s_cselect_b64 vcc, -1, 0')
        k('v_cndmask_b32 v12, v12, v7, vcc')
        k('s_lshr_b32 s37, s20, 1')
        k('s_and_b32 s38, s20, 1')
    common_rows()
    k('s_mul_i32 s37, s37, 72')
    k('s_lshl_b32 s39, s38, 5')
    k('s_add_u32 s37, s37, s39')
    k('s_mul_i32 s38, s38, 288')
    k('s_add_u32 s38, s38, 64')
    gather(3456, list(range(8)), list(range(8)), 37, 144, 38)
    k.label(k.L('E2'))
    k.reset_state()
    k('s_load_dwordx2 s[4:5], s[0:1], %d' % KA_WO)
    k('s_sub_u32 s22, s2, %d' % PR_E2)
    k('s_mul_i32 s23, s22, 52')
    k('s_lshr_b32 s23, s23, 8')
    k('s_mul_i32 s24, s23, 5')
    k('s_sub_u32 s22, s22, s24')
    k('s_mul_i32 s24, s23, 72')
    k('s_mul_i32 s27, s23, %d' % WOS_C)
    k('s_add_u32 s27, s27, %d' % WS_WOS)
    k('v_lshlrev_b32 v7, 4, v1')
    k('s_cmp_eq_u32 s22, 4')
    k('s_cbranch_scc1 %s' % k.L('E2L'))
    k('s_lshr_b32 s25, s22, 1')
    k('s_lshl_b32 s25, s25, 5')
    k('s_and_b32 s26, s22, 1')
    k('s_lshl_b32 s26, s26, 2')
    k('s_add_u32 s24, s24, s25')
    k('s_add_u32 s24, s24, s26')
    k('v_lshrrev_b32 v8, 2, v3')
    k('v_lshlrev_b32 v8, 3, v8')
    k('v_and_b32 v9, 3, v3')
    k('v_add3_u32 v8, v8, v9, s24')
    k('s_mov_b32 s28, 4096')
    k('s_lshl_b32 s29, s22, 10')
    k('s_branch %s' % k.L('E2J'))
    k.label(k.L('E2L'))
    k.reset_state()
    k('v_and_b32 v8, 7, v3')
    k('s_add_u32 s24, s24, 64')
    k('v_add_u32 v8, s24, v8')
    k('s_mov_b32 s28, 512')
    k('s_mov_b32 s29, 73728')
    k('v_lshl_add_u32 v7, v2, 3, v3')
    k('v_lshlrev_b32 v7, 4, v7')
    k('v_mov_b32 v10, 0x%x' % OOB)
    k('v_cmp_gt_u32 vcc, 8, v3')
    k('v_cndmask_b32 v7, v10, v7, vcc')
    k.label(k.L('E2J'))
    k.reset_state()
    k('s_waitcnt lgkmcnt(0)')
    k.srd(8, 4, 0, 576 * 1152)
    k.srd(16, 12, 0, WOS_C, soff=27)
    k('v_mul_u32_u24 v5, %d, v2' % (4 * 1152))
    k('v_lshl_add_u32 v5, v8, 1, v5')
    k('v_mul_u32_u24 v6, %d, v2' % (18 * 1152))
    k('v_lshl_add_u32 v6, v8, 1, v6')
    common_rows()
    k('s_mul_i32 s37, s20, 36')
    k('s_mul_i32 s38, s38, 288')
    k('s_add_u32 s38, s38, 16')
    gather(1152, [0, 1, 2, 3, 18, 19, 20, 21], [0, 1, 72, 73, 144, 145, 216, 217], 37, 144, 38)
    k.label(k.L('F'))
    k.reset_state()
    k('s_load_dwordx2 s[4:5], s[0:1], %d' % KA_X)
    k('s_sub_u32 s22, s2, %d' % PR_F)
    k('s_lshl_b32 s23, s22, 2')
    k('s_add_u32 s23, s23, s20')
    k('s_mul_i32 s24, s23, 18432')
    k('v_mul_u32_u24 v5, 1152, v3')
    k('v_mul_u32_u24 v6, 144, v2')
    k('v_add_u32 v6, v6, v5')
    k('v_add_u32 v6, 128, v6')
    k('v_lshl_add_u32 v5, v2, 4, v5')
    k('v_lshlrev_b32 v7, 4, v1')
    k('s_waitcnt lgkmcnt(0)')
    k.srd(8, 4, 0, XB)
    X = 16
    for j in range(18):
        if j < 16: k('buffer_load_dwordx4 %s, v5, s[8:11], s24 offen offset:%d' % (vq(X + 4 * j), 144 * (j // 2) + 64 * (j % 2)))
        else: k('buffer_load_dwordx4 %s, v6, s[8:11], s24 offen offset:%d' % (vq(X + 4 * j), 576 * (j - 16)))
    k.srd(16, 12, WS_KVT, KVT_BYTES)
    for i in range(4): k('v_mov_b32 v%d, 0' % (8 + i))
    k('v_lshlrev_b32 v4, 4, v0')
    k('s_lshl_b32 s25, s22, 12')
    k('buffer_store_dwordx4 v[8:11], v4, s[16:19], s25 offen')
    k.srd(16, 12, WS_XA, TILE, soff=24)
    for i in range(4): k('v_mov_b32 v%d, 0x3f803f80' % (8 + i))
    for j in range(18):
        x = vq(X + 4 * j)
        if j % 4 == 0: k('s_mov_b32 s25, %d' % (j * 1024))
        k('buffer_store_dwordx4 %s, v7, s[16:19], s25 offen offset:%d' % (x, (j % 4) * 1024))
        k('v_mfma_f32_16x16x32_bf16 v[12:15], v[8:11], %s, %s' % (x, 'v[12:15]' if j else '0'))
        k('v_mfma_f32_16x16x32_bf16 v[88:91], %s, %s, %s' % (x, x, 'v[88:91]' if j else '0'))
    k('v_lshlrev_b32 v4, 2, v2')
    k('v_sub_u32 v4, v3, v4')
    k('v_mov_b32 v13, 0')
    for r in range(4):
        k('v_cmp_eq_u32 vcc, %d, v4' % r)
        k('v_cndmask_b32 v13, v13, v%d, vcc' % (88 + r))
    xlane_sum(k, 13, 14)
    k('v_mov_b32 v14, 0')
    k('v_mov_b32 v15, 0')
    k('v_cmp_eq_u32 vcc, 0, v2')
    k('v_cndmask_b32 v12, v14, v12, vcc')
    k('v_cndmask_b32 v13, v14, v13, vcc')
    k('s_lshl_b32 s24, s23, 10')
    k.srd(16, 12, WS_STA, 1024, soff=24)
    k('buffer_store_dwordx4 v[12:15], v7, s[16:19], 0 offen')
    k.end()
    return k

XT = 19456

def stats_to_lds(k, st, tmp, double, vaug, vs):
    a, b, t0, t1 = st, st + 1, st + 2, st + 3
    k('v_add_f32 v%d, v%d, v%d' % (a, a, t0))
    k('v_add_f32 v%d, v%d, v%d' % (b, b, t1))
    xlane_sum(k, a, t0)
    xlane_sum(k, b, t1)
    inv = f32(1.0 / 576.0)
    k('v_mul_f32 v%d, %s, v%d' % (a, f32(-1.0 / 576.0), a))
    k('v_mul_f32 v%d, %s, v%d' % (b, inv, b))
    k('v_fma_f32 v%d, -v%d, v%d, v%d' % (b, a, a, b))
    k('v_max_f32 v%d, 0, v%d' % (b, b))
    k('v_add_f32 v%d, %s, v%d' % (t0, f32(1e-5), b))
    k('v_rsq_f32 v%d, v%d' % (t0, t0))
    if double:
        k('v_mul_f32 v%d, v%d, v%d' % (b, b, t0))
        k('v_mul_f32 v%d, v%d, v%d' % (b, b, t0))
        k('v_add_f32 v%d, %s, v%d' % (b, f32(1e-5), b))
        k('v_rsq_f32 v%d, v%d' % (b, b))
        k('v_mul_f32 v%d, v%d, v%d' % (t0, t0, b))
    k('ds_write_b32 v%d, v%d' % (vs, t0))
    k('v_rcp_f32 v%d, v%d' % (b, t0))
    q = tmp
    k('v_cvt_pk_bf16_f32 v%d, v%d, v%d' % (t1, a, a))
    k('v_lshlrev_b32 v%d, 16, v%d' % (t1, t1))
    k('v_sub_f32 v%d, v%d, v%d' % (t1, a, t1))
    k('v_cvt_pk_bf16_f32 v%d, v%d, v%d' % (q, a, t1))
    k('v_cvt_pk_bf16_f32 v%d, v%d, v%d' % (t1, b, b))
    k('v_lshlrev_b32 v%d, 16, v%d' % (t1, t1))
    k('v_sub_f32 v%d, v%d, v%d' % (t1, b, t1))
    k('v_cvt_pk_bf16_f32 v%d, v%d, v%d' % (q + 2, b, t1))
    k('v_and_b32 v%d, 0xffff0000, v%d' % (a, q + 2))
    k('v_sub_f32 v%d, v%d, v%d' % (t1, t1, a))
    k('v_mov_b32 v%d, 0' % a)
    k('v_cvt_pk_bf16_f32 v%d, v%d, v%d' % (q + 3, t1, a))
    k('v_cmp_eq_u32 vcc, 0, v2')
    k('v_cndmask_b32 v%d, v%d, v%d, vcc' % (q, a, q))
    k('v_cndmask_b32 v%d, v%d, v%d, vcc' % (q + 2, a, q + 2))
    k('v_cndmask_b32 v%d, v%d, v%d, vcc' % (q + 3, a, q + 3))
    k('v_mov_b32 v%d, v%d' % (q + 1, q))
    return k.one('ds_write_b128 v%d, %s' % (vaug, vq(q)))

def cost(t):
    mn = t.split()[0]
    if mn in TRANS: return 8
    if mn.startswith('ds_write_b64'): return 6
    if mn.startswith('ds_write_b128'): return 12
    if mn.startswith(('v_fma', 'v_cvt_pk', 'v_cndmask')) : return 5
    return 4

class Filler:
    def __init__(self, k):
        self.k = k; self.q = []; self.budget = 0.0; self.last = {}
    def add(self, tag, lst):
        self.q.extend((tag, t) for t in lst)
    def emit(self):
        tag, t = self.q.pop(0)
        s = self.k.one(t)
        if t.startswith(('ds_', 'buffer_')): self.last[tag] = s
        return cost(t)
    def fill(self, rate):
        self.budget += rate
        while self.q and self.budget >= cost(self.q[0][1]) * 0.5:
            self.budget -= self.emit()
        if not self.q: self.budget = min(self.budget, 0.0)
    def flush(self, tag=None):
        while self.q and (tag is None or any(x[0] == tag for x in self.q)):
            self.emit()
    def total(self):
        return sum(cost(t) for _, t in self.q)

def phi_list(a, sc, kc, tmp):
    n = len(a)
    out = []
    out += ['v_mul_f32 v%d, v%d, v%d' % (tmp + i, a[i], kc[i]) for i in range(n)]
    out += ['v_max_f32 v%d, 0, v%d' % (a[i], a[i]) for i in range(n)]
    out += ['v_exp_f32 v%d, v%d clamp' % (tmp + i, tmp + i) for i in range(n)]
    out += ['v_fma_f32 v%d, v%d, v%d, s31' % (a[i], a[i], sc[i]) for i in range(n)]
    out += ['v_add_f32 v%d, v%d, v%d' % (a[i], a[i], tmp + i) for i in range(n)]
    return out

QKV_LEAD = 10
def gen_qkv():
    XI = 0; WL = 4 * XT; SA = WL + WQL_C; LX = SA + 256
    k = K('qkv_kernel', 256, 256, LX + 2048, 256 + 236, 256)
    k.begin()
    k('s_load_dwordx2 s[12:13], s[0:1], %d' % KA_WS)
    k.ids(20)
    decode(k, MAPS['qkv'])
    k('s_lshl_b32 s23, s22, 2')
    k('s_add_u32 s24, s23, s20')
    k('v_lshlrev_b32 v5, 4, v1')
    k('s_lshl_b32 s25, s24, 10')
    k('s_mul_i32 s26, s24, %d' % TILE)
    k('s_lshl_b32 s27, s21, 2')
    k('s_add_u32 s27, s27, s20')
    k('s_mul_i32 s28, s27, %d' % WQS_WAVE)
    k('s_mul_i32 s29, s21, %d' % WQL_C)
    k('s_mul_i32 s30, s20, %d' % XT)
    k('s_lshl_b32 s32, s20, 10')
    k('s_add_u32 s33, s32, %d' % WL)
    k('s_waitcnt lgkmcnt(0)')
    k.srd(4, 12, WS_STA, 1024, soff=25)
    ST = 28
    k('buffer_load_dwordx4 %s, v5, s[4:7], 0 offen' % vq(ST))
    k.srd(8, 12, WS_XA, TILE, soff=26)
    k.srd(16, 12, WS_WQS, WQS_WAVE, soff=28)
    k.srd(36, 12, WS_WQL, WQL_C, soff=29)
    xseq = {}; lseq = {}; wseq = {}
    def xload(j):
        if j % 4 == 0:
            k('s_add_u32 m0, s30, %d' % (j * 1024))
            k('s_mov_b32 s34, %d' % (j * 1024))
        xseq[j] = k.one('buffer_load_dwordx4 v5, s[8:11], s34 offen offset:%d lds' % ((j % 4) * 1024))
    def lload(n):
        k('s_add_u32 m0, s33, %d' % (n * 4096))
        k('s_add_u32 s35, s32, %d' % (n * 4096))
        lseq[n] = k.one('buffer_load_dwordx4 v5, s[36:39], s35 offen lds')
    def wload(f):
        if f % 4 == 0: k('s_mov_b32 s40, %d' % (f * 1024))
        wseq[f] = k.one('buffer_load_dwordx4 %s, v5, s[16:19], s40 offen offset:%d' % (aq(4 * f), (f % 4) * 1024))
    prog = []
    lq_need = {0: [0, 4], 1: [1, 5], 2: [2], 3: [3, 6], 4: []}
    for G in range(5):
        js = list(range(4 * G, min(4 * G + 4, 18)))
        prog += [('x', j) for j in js] + [('l', n) for n in lq_need[G]] + [('w', f) for j in js for f in (2 * j, 2 * j + 1)]
    prog += [('aug', 0)] + [('w', 36 + j) for j in range(18)]
    AUG = 216
    def augload():
        k('s_mul_i32 s59, s21, %d' % (14 * 256))
        k.srd(4, 12, WS_AUGQ, 14 * 256, soff=59)
        k('s_mul_i32 s59, s20, 768')
        for i in range(3): k('buffer_load_dwordx4 %s, v6, s[4:7], s59 offen offset:%d' % (aq(AUG + 4 * i), 256 * i))
        k('buffer_load_dwordx4 %s, v6, s[4:7], 0 offen offset:%d' % (aq(AUG + 12), 256 * 12))
        k('buffer_load_dwordx4 %s, v7, s[4:7], 0 offen offset:%d' % (aq(AUG + 16), 256 * 13))
    pi = [0]
    def issue(n):
        for _ in range(n):
            if pi[0] >= len(prog): return
            kind, a = prog[pi[0]]; pi[0] += 1
            if kind == 'x': xload(a)
            elif kind == 'l': lload(a)
            elif kind == 'w': wload(a)
            else: augload()
    issue(14)
    k('v_mov_b32 v8, 0x%x' % OOB)
    k('v_cmp_gt_u32 vcc, 16, v1')
    k('v_cndmask_b32 v6, v8, v5, vcc')
    k('v_and_b32 v7, 0x7f, v5')
    k('v_cndmask_b32 v7, v8, v7, vcc')
    for s in range(4):
        k('s_add_u32 s%d, s20, %d' % (44 + s, s))
        k('s_and_b32 s%d, s%d, 3' % (44 + s, 44 + s))
        k('s_mul_i32 s42, s%d, %d' % (44 + s, XT))
        k('v_add_u32 v%d, s42, v5' % (10 + s))
    k('v_add_u32 v14, %d, v5' % WL)
    k('v_and_b32 v15, 7, v3')
    k('v_lshl_add_u32 v15, v2, 3, v15')
    k('v_lshlrev_b32 v15, 4, v15')
    k('v_add_u32 v15, %d, v15' % (WL + 18432))
    k('v_add_u32 v16, %d, v10' % (18 * 1024))
    k('s_lshl_b32 s42, s20, 6')
    k('s_add_u32 s42, s42, %d' % SA)
    k('v_lshl_add_u32 v17, v3, 2, s42')
    k('s_mov_b32 s31, %s' % f32(1e-6))
    issue(6)
    k.stamp()
    stats_to_lds(k, ST, 32, False, 16, 17)
    AK = 64; AV = 80; AQ = 96; AL = 112; ALQ = 116
    BF = 120
    SC = 168
    T = 208; PK = 32; PV = 48; LL = 216; LP = 224; DD = 232
    def reads(j, ph, b):
        out = ['ds_read_b128 %s, v%d offset:%d' % (vq(b + 4 * s), 10 + s, j * 1024) for s in range(4)]
        if ph == 0 and j < 18:
            out.append('ds_read_b128 %s, v14 offset:%d' % (vq(b + 16), j * 1024))
            out.append('ds_read_b128 %s, v15 offset:%d' % (vq(b + 20), j * 512))
        return out
    def sync(G):
        js = range(4 * G, min(4 * G + 4, 18))
        need = max([xseq[j] for j in js] + [lseq[n] for n in lq_need[G]])
        k.wait_vm_seq(need)
        if G == 0: k('s_waitcnt lgkmcnt(0)')
        k('s_barrier')
    F = Filler(k)
    steps = [(0, j) for j in range(19)] + [(1, j) for j in range(19)]
    need = []
    for ph, j in steps:
        it = ('w', 2 * j + 1) if ph == 0 and j < 18 else ('aug', 0) if ph == 0 else ('w', 36 + min(j, 17))
        need.append(prog.index(it))
    sync(0)
    k.stamp()
    for t in reads(0, 0, BF): k(t)
    for s in range(4):
        k('s_lshl_b32 s42, s%d, 6' % (44 + s))
        k('s_add_u32 s42, s42, %d' % SA)
        k('v_lshl_add_u32 v8, v3, 2, s42')
        k('v_lshl_add_u32 v9, v2, 4, s42')
        k('ds_read_b32 v%d, v8' % (SC + s))
        k('ds_read_b128 %s, v9' % vq(SC + 8 + 4 * s))
    F.add('sc', ['v_mul_f32 v%d, %s, v%d' % (SC + 4 + s, f32(LOG2E), SC + s) for s in range(4)])
    F.add('sc', ['v_mul_f32 v%d, %s, v%d' % (SC + 24 + s, f32(LOG2E), SC + 8 + s) for s in range(16)])
    ea = []
    ea += ['s_mul_i32 s41, s27, %d' % KVH]
    ea += ['s_add_u32 s48, s12, 0x%x' % WS_KVT, 's_addc_u32 s49, s13, 0', 's_add_u32 s48, s48, s41', 's_addc_u32 s49, s49, 0', 's_mov_b32 s50, %d' % KVH, 's_mov_b32 s51, 0x20000']
    ea += ['v_lshlrev_b32 v18, 2, v1']
    ea += ['v_lshrrev_b32 v8, 1, v3', 's_lshl_b32 s41, s20, 1', 'v_cmp_eq_u32 s[52:53], s41, v8', 'v_cmp_eq_u32 s[54:55], s20, v2',
           'v_and_b32 v9, 1, v3', 'v_lshlrev_b32 v9, 2, v9', 'v_mov_b32 v8, 0x%x' % OOB,
           'v_lshl_add_u32 v19, v2, 3, v9', 'v_add_u32 v19, 1024, v19', 'v_cndmask_b32 v19, v8, v19, s[52:53]',
           'v_lshlrev_b32 v20, 2, v3', 'v_add_u32 v20, 1152, v20', 'v_cndmask_b32 v20, v8, v20, s[54:55]',
           'v_add_u32 v21, 1344, v9', 'v_cndmask_b32 v21, v8, v21, s[52:53]', 'v_cndmask_b32 v21, v8, v21, s[54:55]',
           'v_lshlrev_b32 v22, 3, v1', 'v_cmp_gt_u32 vcc, 32, v1', 'v_cndmask_b32 v23, v8, v22, vcc',
           'v_and_b32 v9, 2, v3', 'v_cmp_eq_u32 s[56:57], 0, v9',
           's_lshl_b32 s41, s20, 9', 's_add_u32 s41, s41, %d' % LX, 'v_add_u32 v24, s41, v22']
    for s in range(1, 4):
        ea += ['s_lshl_b32 s41, s%d, 9' % (44 + s), 's_add_u32 s41, s41, %d' % LX, 'v_add_u32 v%d, s41, v22' % (24 + s)]
    F.add('ea', ea)
    for si, (ph, j) in enumerate(steps):
        b = BF + 24 * (si % 2); bn = BF + 24 * ((si + 1) % 2)
        nxt = []
        if si + 1 < len(steps):
            ph2, j2 = steps[si + 1]
            if ph2 == 0 and j2 % 4 == 0 and j2 < 18:
                while max([-1] + list(xseq)) < min(j2 + 3, 17) or any(n not in lseq for n in lq_need[j2 // 4]): issue(1)
                sync(j2 // 4)
            nxt = reads(j2, ph2, bn)
        if ph == 0:
            fr = [2 * j, 2 * j + 1] if j < 18 else None
            wk = aq(8 * j) if j < 18 else aq(AUG); wv = aq(8 * j + 4) if j < 18 else aq(AUG + 4)
            wl = vq(b + 16) if j < 18 else aq(AUG + 12); wq = vq(b + 20) if j < 18 else aq(AUG + 16)
            mf = [(AK + 4 * s, vq(b + 4 * s), wk) for s in range(4)] + [(AV + 4 * s, vq(b + 4 * s), wv) for s in range(4)]
            mf += [(AL, vq(b), wl), (ALQ, wq, vq(b))]
        else:
            fr = [36 + j] if j < 18 else None
            wq = aq(144 + 4 * j) if j < 18 else aq(AUG + 8)
            mf = [(AQ + 4 * s, wq, vq(b + 4 * s)) for s in range(4)]
        while pi[0] <= need[si]: issue(1)
        todo = max(0, min(len(prog), need[min(si + 1, len(steps) - 1)] + 1 + QKV_LEAD) - pi[0])
        if ph == 1 and j == 0:
            k.stamp()
            F.flush()
            ep = []
            RS = SC + 8; RK = SC + 24
            a = [AL + r for r in range(4)]
            ep += ['v_mul_f32 v%d, v%d, v%d' % (T + 4 + r, a[r], RS + r) for r in range(4)]
            ep += phi_list(a, [RS + r for r in range(4)], [RK + r for r in range(4)], T)
            ep += ['v_cndmask_b32 v%d, v%d, v%d, s[56:57]' % (a[r], T + 4 + r, a[r]) for r in range(4)]
            ep += ['v_cvt_pk_bf16_f32 v%d, v%d, v%d' % (LL, a[0], a[1]), 'v_cvt_pk_bf16_f32 v%d, v%d, v%d' % (LL + 1, a[2], a[3])]
            ep += ['ds_write_b64 v24, %s' % vq(LL, 2)]
            F.add('lx', ep)
            ep = []
            for s in range(4):
                a = [AK + 4 * s + r for r in range(4)]
                ep += phi_list(a, [RS + 4 * s + r for r in range(4)], [RK + 4 * s + r for r in range(4)], T + 4 * (s % 2))
                ep += ['v_cvt_pk_bf16_f32 v%d, v%d, v%d' % (PK + 2 * s, a[0], a[1]), 'v_cvt_pk_bf16_f32 v%d, v%d, v%d' % (PK + 2 * s + 1, a[2], a[3])]
            for s in range(4):
                a = [AV + 4 * s + r for r in range(4)]
                ep += ['v_mul_f32 v%d, v%d, v%d' % (a[r], a[r], RS + 4 * s + r) for r in range(4)]
                ep += ['v_cvt_pk_bf16_f32 v%d, v%d, v%d' % (PV + 2 * s, a[0], a[1]), 'v_cvt_pk_bf16_f32 v%d, v%d, v%d' % (PV + 2 * s + 1, a[2], a[3])]
            F.add('kv', ep)
            rate1 = F.total() / (4 * 11.0)
        if ph == 1 and j == 4:
            F.flush('lx')
            k.wait_lg_seq(F.last['lx'])
            k('s_barrier')
            for s in range(1, 4): k('ds_read_b64 %s, v%d' % (vq(LL + 2 * s, 2), 24 + s))
        if ph == 1 and j == 11:
            F.flush()
            k('v_mov_b32 v%d, 0x3f803f80' % T)
            for i in range(8): k('v_cndmask_b32 v%d, v%d, v%d, s[56:57]' % (LP + i, LL + i, T))
            for n, (A, B) in enumerate(((PV, PK), (PV, LL), (LP, PK), (LP, LL))):
                k('v_mfma_f32_16x16x32_bf16 %s, %s, %s, 0' % (vq(DD + 4 * n), vq(A), vq(B)))
            for n, (A, B) in enumerate(((PV, PK), (PV, LL), (LP, PK), (LP, LL))):
                k('v_mfma_f32_16x16x32_bf16 %s, %s, %s, %s' % (vq(DD + 4 * n), vq(A + 4), vq(B + 4), vq(DD + 4 * n)))
            a = [ALQ + r for r in range(4)]
            ep = phi_list(a, [SC] * 4, [SC + 4] * 4, T)
            ep += ['v_cvt_pk_bf16_f32 v%d, v%d, v%d' % (a[0], a[0], a[1]), 'v_cvt_pk_bf16_f32 v%d, v%d, v%d' % (a[1], a[2], a[3])]
            ep += ['s_lshl_b32 s41, s24, 11', 's_lshl_b32 s42, s21, 8', 's_add_u32 s41, s41, s42',
                   's_add_u32 s4, s12, 0x%x' % WS_PQL, 's_addc_u32 s5, s13, 0', 's_mov_b32 s6, 0x%x' % (128 * 2048), 's_mov_b32 s7, 0x20000',
                   'buffer_store_dwordx2 %s, v23, s[4:7], s41 offen' % vq(a[0], 2)]
            ep += ['buffer_atomic_add_f32 v%d, v18, s[48:51], 0 offen offset:%d' % (DD + r, 256 * r) for r in range(4)]
            ep += ['buffer_atomic_add_f32 v%d, v19, s[48:51], 0 offen offset:%d' % (DD + 4 + r, 32 * r) for r in range(4)]
            ep += ['buffer_atomic_add_f32 v%d, v20, s[48:51], 0 offen offset:%d' % (DD + 8 + r, o) for r, o in ((2, 0), (3, 64), (0, 128))]
            ep += ['buffer_atomic_add_f32 v%d, v21, s[48:51], 0 offen offset:%d' % (DD + 12 + r, o) for r, o in ((2, 0), (3, 8), (0, 16))]
            ep += ['s_add_u32 s8, s12, 0x%x' % WS_PQM, 's_addc_u32 s9, s13, 0', 's_mov_b32 s10, 0x%x' % (128 * 16384), 's_lshl_b32 s42, s27, 9']
            for s in range(4):
                ep += ['s_add_u32 s%d, s%d, s23' % (44 + s, 44 + s), 's_lshl_b32 s%d, s%d, 14' % (44 + s, 44 + s), 's_add_u32 s%d, s%d, s42' % (44 + s, 44 + s)]
            F.add('at', ep)
            rate1 = F.total() / (4 * 7.0)
        if fr: k.wait_vm_seq(max(wseq[f] for f in fr))
        for n, (a, A, B) in enumerate(mf):
            k('v_mfma_f32_16x16x32_bf16 %s, %s, %s, %s' % (vq(a), A, B, vq(a) if j else '0'))
            if nxt: k(nxt.pop(0))
            if len(nxt) > len(mf) - n - 1 and nxt: k(nxt.pop(0))
            m_ = (todo * (n + 1)) // len(mf) - (todo * n) // len(mf)
            issue(m_)
            F.fill(8 if ph == 0 else rate1)
        assert not nxt
    assert pi[0] == len(prog)
    k.stamp()
    F.flush()
    for s in range(4):
        a = [AQ + 4 * s + r for r in range(4)]
        for t in phi_list(a, [SC + s] * 4, [SC + 4 + s] * 4, T + 4 * (s % 2)): k(t)
        k('v_cvt_pk_bf16_f32 v%d, v%d, v%d' % (a[0], a[0], a[1]))
        k('v_cvt_pk_bf16_f32 v%d, v%d, v%d' % (a[1], a[2], a[3]))
        k('buffer_store_dwordx2 %s, v22, s[8:11], s%d offen' % (vq(a[0], 2), 44 + s))
    k.end()
    return k

def slice_addr(k, vfull, vleft, sc):
    k('s_lshl_b32 s40, s%d, 11' % sc)
    k('v_lshl_add_u32 v%d, v1, 4, s40' % vfull)
    k('s_lshl_b32 s40, s%d, 8' % sc)
    k('s_add_u32 s40, s40, 16384')
    k('v_lshlrev_b32 v4, 4, v3')
    k('v_lshl_add_u32 v4, v2, 3, v4')
    k('v_add_u32 v4, s40, v4')
    k('v_mov_b32 v%d, 0x%x' % (vleft, OOB))
    k('v_cmp_gt_u32 vcc, 2, v2')
    k('v_cndmask_b32 v%d, v%d, v4, vcc' % (vleft, vleft))

def stats_out(k, vals, left, tmp, srd, voff):
    s, q, t = tmp, tmp + 1, tmp + 2
    allv = list(vals) + list(left)
    k('v_add_f32 v%d, v%d, v%d' % (s, allv[0], allv[1]))
    k('v_mul_f32 v%d, v%d, v%d' % (q, allv[0], allv[0]))
    k('v_mul_f32 v%d, v%d, v%d' % (t, allv[1], allv[1]))
    for i, r in enumerate(allv[2:]):
        k('v_add_f32 v%d, v%d, v%d' % (s, s, r))
        k('v_fmac_f32 v%d, v%d, v%d' % (q if i % 2 else t, r, r))
    k('v_add_f32 v%d, v%d, v%d' % (q, q, t))
    xlane_sum(k, s, t)
    xlane_sum(k, q, t + 1)
    k('buffer_store_dwordx2 %s, v%d, s[%d:%d], 0 offen' % (vq(s, 2), voff, srd, srd + 3))

def stats_addr(k, d, sc):
    k('s_lshr_b32 s40, s%d, 1' % sc)
    k('s_lshl_b32 s40, s40, 8')
    k('s_and_b32 s41, s%d, 1' % sc)
    k('s_lshl_b32 s41, s41, 3')
    k('s_add_u32 s40, s40, s41')
    k('v_lshl_add_u32 v4, v3, 4, s40')
    k('v_mov_b32 v%d, 0x%x' % (d, OOB))
    k('v_cmp_eq_u32 vcc, 0, v2')
    k('v_cndmask_b32 v%d, v%d, v4, vcc' % (d, d))

def gen_attn():
    KVB = 0; WOI = 65536
    k = K('attn_kernel', 256, 256, WOI + WOS_C, 224 + 128, 224)
    k.begin()
    k('s_load_dwordx2 s[12:13], s[0:1], %d' % KA_WS)
    k.ids(20)
    decode(k, MAPS['att'])
    k('s_lshl_b32 s23, s22, 2')
    k('s_add_u32 s24, s23, s20')
    k('v_and_b32 v4, 3, v3')
    k('v_lshrrev_b32 v5, 2, v3')
    k('v_lshlrev_b32 v6, 8, v4')
    k('v_lshl_add_u32 v6, v5, 6, v6')
    k('v_lshl_add_u32 v6, v2, 4, v6')
    k('v_lshlrev_b32 v7, 5, v4')
    k('v_lshl_add_u32 v7, v5, 3, v7')
    k('v_add_u32 v7, 1024, v7')
    k('v_min_u32 v4, 2, v4')
    k('v_lshlrev_b32 v8, 6, v4')
    k('v_lshl_add_u32 v8, v2, 4, v8')
    k('v_add_u32 v8, 1152, v8')
    k('v_lshlrev_b32 v9, 3, v4')
    k('v_add_u32 v9, 1344, v9')
    k('v_mov_b32 v4, 0x%x' % OOB)
    k('v_cmp_eq_u32 vcc, 0, v2')
    k('v_cndmask_b32 v10, v4, v7, vcc')
    k('v_cndmask_b32 v11, v4, v9, vcc')
    k('v_cmp_eq_u32 vcc, 1, v2')
    k('v_cndmask_b32 v7, v4, v7, vcc')
    k('v_cndmask_b32 v9, v4, v9, vcc')
    k('s_mul_i32 s25, s20, %d' % (8 * KVH))
    k('s_waitcnt lgkmcnt(0)')
    k.srd(4, 12, WS_KVT, 8 * KVH, soff=25)
    ST = 64
    for n in range(8):
        s = ST + 12 * n
        if n % 2 == 0: k('s_mov_b32 s26, %d' % (n * KVH))
        o = (n % 2) * KVH
        lo = (n % 4) < 2
        k('buffer_load_dwordx4 %s, v6, s[4:7], s26 offen offset:%d' % (vq(s), o))
        k('buffer_load_dwordx4 %s, v8, s[4:7], s26 offen offset:%d' % (vq(s + 4), o))
        k('buffer_load_dwordx2 %s, v%d, s[4:7], s26 offen offset:%d' % (vq(s + 8, 2), 10 if lo else 7, o))
        k('buffer_load_dwordx2 %s, v%d, s[4:7], s26 offen offset:%d' % (vq(s + 10, 2), 11 if lo else 9, o))
    k('v_lshlrev_b32 v5, 4, v1')
    k('v_lshlrev_b32 v12, 3, v1')
    k('v_cmp_gt_u32 vcc, 32, v1')
    k('v_cndmask_b32 v13, v4, v12, vcc')
    k('s_lshl_b32 s25, s24, 14')
    k.srd(8, 12, WS_PQM, 16384, soff=25)
    k('s_lshl_b32 s25, s24, 11')
    k.srd(16, 12, WS_PQL, 2048, soff=25)
    k('s_mul_i32 s25, s21, %d' % WOS_C)
    k.srd(36, 12, WS_WOS, WOS_C, soff=25)
    k('s_lshl_b32 s27, s20, 10')
    k('s_add_u32 s28, s27, %d' % WOI)
    dseq = {}; pseq = {}
    def pload(h):
        if h % 8 == 0: k('s_mov_b32 s29, %d' % (h * 512))
        k('buffer_load_dwordx2 %s, v12, s[8:11], s29 offen offset:%d' % (aq(4 * h, 2), (h % 8) * 512))
        pseq[h] = k.one('buffer_load_dwordx2 %s, v13, s[16:19], 0 offen offset:%d' % (aq(4 * h + 2, 2), (h // 4) * 256))
    def dload(n):
        k('s_add_u32 m0, s28, %d' % (n * 4096))
        k('s_add_u32 s30, s27, %d' % (n * 4096))
        dseq[n] = k.one('buffer_load_dwordx4 v5, s[36:39], s30 offen lds')
    prog = [('p', 0), ('p', 1), ('p', 2), ('p', 3), ('d', 18), ('d', 19), ('d', 20), ('d', 0), ('d', 1), ('d', 2), ('d', 3)]
    for p in range(2, 16):
        prog += [('p', 2 * p), ('p', 2 * p + 1), ('d', p + 2)]
    prog += [('x', 0)]
    XR = 20
    def xload():
        k('s_mul_i32 s25, s24, %d' % TILE)
        k.srd(4, 12, WS_XA, TILE, soff=25)
        k.srd(44, 12, WS_XBUF, TILE, soff=25)
        k('buffer_load_dwordx4 %s, v14, s[4:7], 0 offen' % vq(XR))
        k('buffer_load_dwordx4 %s, v14, s[4:7], 0 offen offset:1024' % vq(XR + 4))
        k('buffer_load_dwordx2 %s, v15, s[4:7], 0 offen' % vq(XR + 8, 2))
    pi = [0]
    def issue(n):
        for _ in range(n):
            if pi[0] >= len(prog): return
            kind, a = prog[pi[0]]; pi[0] += 1
            if kind == 'p': pload(a)
            elif kind == 'd': dload(a)
            else: xload()
    issue(8)
    slice_addr(k, 14, 15, 21)
    stats_addr(k, 16, 21)
    k('s_lshl_b32 s25, s20, 14')
    k('v_add_u32 v17, s25, v5')
    k.stamp()
    for n in range(8):
        s = ST + 12 * n
        z = 160 + 8 * (n % 2)
        odd = n % 2
        k('v_cvt_pk_bf16_f32 v%d, v%d, v%d' % (z, s, s + 1))
        k('v_cvt_pk_bf16_f32 v%d, v%d, v%d' % (z + 1, s + 2, s + 3))
        k('v_cvt_pk_bf16_f32 v%d, v%d, v%d' % (z + 2 + odd, s + 8, s + 9))
        k('v_cvt_pk_bf16_f32 v%d, v%d, v%d' % (z + 4, s + 4, s + 5))
        k('v_cvt_pk_bf16_f32 v%d, v%d, v%d' % (z + 5, s + 6, s + 7))
        k('v_cvt_pk_bf16_f32 v%d, v%d, v%d' % (z + 6 + odd, s + 10, s + 11))
        if n < 2:
            k('v_mov_b32 v%d, 0' % (z + 3 - odd))
            k('v_mov_b32 v%d, 0' % (z + 7 - odd))
        k('ds_write_b128 v17, %s offset:%d' % (vq(z), 2048 * n))
        k('ds_write_b128 v17, %s offset:%d' % (vq(z + 4), 2048 * n + 1024))
        issue(1)
    k('v_add_u32 v18, %d, v5' % WOI)
    k('v_add_u32 v19, %d, v5' % (WOI + 65536))
    k('v_and_b32 v4, 7, v3')
    k('v_lshl_add_u32 v4, v2, 3, v4')
    k('v_lshlrev_b32 v4, 4, v4')
    k('v_add_u32 v30, %d, v4' % (WOI + 73728))
    k('v_cmp_eq_u32 s[48:49], 1, v2')
    k('v_cmp_eq_u32 s[50:51], 2, v2')
    k('v_cmp_eq_u32 s[52:53], 3, v2')
    k('s_mov_b32 s31, 0xffff0000')
    ACC = 32; EPS = 52; AF = 64; DD = 112; WF = 144; OQ = 184; PP = 192; LQ = 196; T = 204
    k('v_mov_b32 v%d, 0' % EPS)
    k('v_mov_b32 v%d, 0' % (EPS + 1))
    k('v_mov_b32 v%d, %s' % (EPS + 2, f32(1e-6)))
    k('v_mov_b32 v%d, %s' % (EPS + 3, f32(1e-6)))
    def dsync(upto):
        k.wait_vm_seq(max(dseq[n] for n in list(range(upto + 1)) + [18, 19, 20]))
        k('s_barrier')
    k('s_waitcnt lgkmcnt(0)')
    k.stamp()
    dsync(3)
    k.stamp()
    def a_reads(p):
        for j in range(2):
            h = 2 * p + j
            s = AF + 16 * (p % 3) + 8 * j
            k('ds_read_b128 %s, v5 offset:%d' % (vq(s), KVB + h * 2048))
            k('ds_read_b128 %s, v5 offset:%d' % (vq(s + 4), KVB + h * 2048 + 1024))
    def w_reads(p):
        for i in range(5):
            d = WF + 20 * (p % 2) + 4 * i
            if i < 4: k('ds_read_b128 %s, v%d offset:%d' % (vq(d), 18 if p < 16 else 19, (p % 16) * 4096 + 1024 * i))
            else: k('ds_read_b128 %s, v30 offset:%d' % (vq(d), p * 512))
    def b_mfma(p):
        for j in range(2):
            h = 2 * p + j
            s = AF + 16 * (p % 3) + 8 * j
            d = DD + 16 * (p % 2) + 8 * j
            k('v_mfma_f32_16x16x32_bf16 %s, %s, %s, %s' % (vq(d + 4), vq(s + 4), aq(4 * h), vq(EPS)))
            k('v_mfma_f32_16x16x32_bf16 %s, %s, %s, 0' % (vq(d), vq(s), aq(4 * h)))
    def c_valu(p):
        out = []
        o = OQ + 4 * (p % 2)
        ds = [DD + 16 * (p % 2) + 8 * j for j in range(2)]
        for j in range(2): out.append('v_rcp_f32 v%d, v%d' % (T + j, ds[j] + 6))
        for j in range(2):
            for r in (4, 5, 0, 1, 2, 3): out.append('v_mul_f32 v%d, v%d, v%d' % (ds[j] + r, ds[j] + r, T + j))
        for j in range(2):
            h = 2 * p + j
            out.append('v_cvt_pk_bf16_f32 v%d, v%d, v%d' % (o + 2 * j, ds[j], ds[j] + 1))
            out.append('v_cvt_pk_bf16_f32 v%d, v%d, v%d' % (o + 2 * j + 1, ds[j] + 2, ds[j] + 3))
            out.append('v_cvt_pk_bf16_f32 v%d, v%d, v%d' % (PP + h % 4, ds[j] + 4, ds[j] + 5))
        if p % 2 == 1:
            m = p // 2
            out.append('v_cndmask_b32 v%d, v%d, v%d, s[48:49]' % (LQ + m, PP, PP + 1))
            out.append('v_cndmask_b32 v%d, v%d, v%d, s[50:51]' % (LQ + m, LQ + m, PP + 2))
            out.append('v_cndmask_b32 v%d, v%d, v%d, s[52:53]' % (LQ + m, LQ + m, PP + 3))
        return out
    def d_list(p):
        o = OQ + 4 * (p % 2) if p < 16 else LQ + 4 * (p - 16)
        return ['v_mfma_f32_16x16x32_bf16 %s, %s, %s, %s' % (vq(ACC + 4 * i), vq(WF + 20 * (p % 2) + 4 * i), vq(o), vq(ACC + 4 * i) if p else '0') for i in range(5)]
    a_reads(0); a_reads(1)
    b_mfma(0)
    for p in range(16):
        if p in (8,): k.stamp()
        issue(3)
        if p % 4 == 0 and p:
            while (p + 3 if p < 12 else 17) not in dseq: issue(1)
            dsync(p + 3 if p < 12 else 17)
        if p + 2 < 16: a_reads(p + 2)
        w_reads(p)
        if p + 1 < 16:
            while 2 * p + 3 not in pseq: issue(1)
            b_mfma(p + 1)
        cv = c_valu(p)
        dl = d_list(p - 1) if p >= 1 else []
        per = (len(cv) + 4) // 5
        for m in dl:
            k(m)
            for _ in range(per):
                if cv: k(cv.pop(0))
        for t in cv: k(t)
    issue(100)
    w_reads(16)
    for m in d_list(15): k(m)
    w_reads(17)
    for m in d_list(16): k(m)
    for m in d_list(17): k(m)
    k.stamp()
    k('s_lshl_b32 s25, s24, 10')
    k.srd(4, 12, WS_STB, 1024, soff=25)
    V = 64
    for i in range(10):
        k('v_lshlrev_b32 v%d, 16, v%d' % (V + 2 * i, XR + i))
        k('v_and_b32 v%d, s31, v%d' % (V + 2 * i + 1, XR + i))
    k('v_cmp_gt_u32 vcc, 2, v2')
    for r in range(4): k('v_cndmask_b32 v%d, v%d, v%d, vcc' % (ACC + 16 + r, EPS, ACC + 16 + r))
    for i in range(20): k('v_add_f32 v%d, v%d, v%d' % (V + i, V + i, ACC + i))
    for i in range(10): k('v_cvt_pk_bf16_f32 v%d, v%d, v%d' % (XR + i, V + 2 * i, V + 2 * i + 1))
    k('buffer_store_dwordx4 %s, v14, s[44:47], 0 offen' % vq(XR))
    k('buffer_store_dwordx4 %s, v14, s[44:47], 0 offen offset:1024' % vq(XR + 4))
    k('buffer_store_dwordx2 %s, v15, s[44:47], 0 offen' % vq(XR + 8, 2))
    stats_out(k, range(V, V + 16), range(V + 16, V + 20), T, 4, 16)
    k.end()
    return k

GELU_A = -2.0 * math.sqrt(2.0 / math.pi) * LOG2E
GELU_B = GELU_A * 0.044715
MLP_OPT = dict(lmin=12, nr=60, vm=70, st='')

def gen_mlp():
    XI = 0; HI = 4 * XT; SA = HI + 73728
    k = K('mlp_kernel', 256, 256, SA + 256, 512, 256)
    k.begin()
    k('s_load_dwordx2 s[12:13], s[0:1], %d' % KA_WS)
    k.ids(20)
    decode(k, MAPS['mlp'])
    k('s_lshl_b32 s23, s22, 2')
    k('s_add_u32 s24, s23, s20')
    k('v_lshlrev_b32 v5, 4, v1')
    k('s_lshl_b32 s25, s24, 10')
    k('s_mul_i32 s26, s24, %d' % TILE)
    k('s_lshl_b32 s27, s21, 2')
    k('s_add_u32 s27, s27, s20')
    k('s_mul_i32 s27, s27, %d' % STREAM_WAVE)
    k('s_mul_i32 s30, s20, %d' % XT)
    k('s_waitcnt lgkmcnt(0)')
    k.srd(4, 12, WS_STB, 1024, soff=25)
    ST = 28
    k('buffer_load_dwordx4 %s, v5, s[4:7], 0 offen' % vq(ST))
    k.srd(8, 12, WS_XBUF, TILE, soff=26)
    k.srd(16, 12, WS_STREAM, STREAM_WAVE, soff=27)
    NR = MLP_OPT['nr']; LMIN = MLP_OPT['lmin']; VM = MLP_OPT['vm']
    FR = []
    for q in range(3):
        FR += [('w', 54 * q + n) for n in range(54)] + [('a', 3 * q + i) for i in range(3)]
    FR += [('w', n) for n in range(162, 324)]
    xseq = {}; fseq = {}
    st = dict(nf=0, vt=0.0, est=0.0, nx=0)
    def xload():
        j = st['nx']; st['nx'] += 1
        if j % 4 == 0:
            k('s_add_u32 m0, s30, %d' % (j * 1024))
            k('s_mov_b32 s34, %d' % (j * 1024))
        xseq[j] = k.one('buffer_load_dwordx4 v5, s[8:11], s34 offen offset:%d lds' % ((j % 4) * 1024))
        st['vt'] += VM
    def fload():
        f = st['nf']; st['nf'] += 1
        kind, n = FR[f]
        d = aq(4 * (f % NR))
        if kind == 'w':
            if n % 4 == 0 or FR[f - 1][0] == 'a': k('s_mov_b32 s28, %d' % (n // 4 * 4096))
            fseq[f] = k.one('buffer_load_dwordx4 %s, v5, s[16:19], s28 offen offset:%d' % (d, (n % 4) * 1024))
            st['vt'] += VM
        else:
            fseq[f] = k.one('buffer_load_dwordx4 %s, v6, s[36:39], s%d offen offset:%d' % (d, (29, 33, 35)[n // 3], (n % 3) * 256))
            st['vt'] += VM / 4
    for j in range(3): xload()
    for f in range(9): fload()
    for j in range(3): xload()
    k('v_mov_b32 v8, 0x%x' % OOB)
    k('v_cmp_gt_u32 vcc, 16, v1')
    k('v_cndmask_b32 v6, v8, v5, vcc')
    k('s_mul_i32 s29, s21, 9216')
    k.srd(36, 12, WS_AUG1, 9216, soff=29)
    k('s_mul_i32 s29, s20, 768')
    k('s_add_u32 s33, s29, 3072')
    k('s_add_u32 s35, s29, 6144')
    k('v_add_u32 v7, %d, v5' % (2 * XT))
    k('v_add_u32 v8, %d, v5' % HI)
    k('v_add_u32 v9, %d, v5' % (HI + 36864))
    k('s_mul_i32 s27, s20, 3')
    for i in range(3):
        k('s_add_u32 s32, s27, %d' % i)
        k('s_lshr_b32 s31, s32, 1')
        k('s_lshl_b32 s31, s31, 12')
        k('s_and_b32 s32, s32, 1')
        k('s_lshl_b32 s32, s32, 3')
        k('s_add_u32 s32, s32, s31')
        k('v_add_u32 v%d, s32, v8' % (10 + i))
    k('s_add_u32 s32, s30, %d' % (18 * 1024))
    k('v_add_u32 v13, s32, v5')
    k('s_lshl_b32 s32, s20, 6')
    k('s_add_u32 s32, s32, %d' % SA)
    k('v_lshl_add_u32 v14, v3, 2, s32')
    for f in range(6): fload()
    k.stamp()
    stats_to_lds(k, ST, 32, True, 13, 14)
    P = [32, 80]; O1 = 80; O2 = [32, 48, 64, 160]; BF = 176; GT = 208; GC = 16
    def x_read(j, t, dst):
        return 'ds_read_b128 %s, v%d offset:%d' % (vq(dst), 5 if t < 2 else 7, (t % 2) * XT + j * 1024)
    def h_read(kg, t, dst):
        return 'ds_read_b128 %s, v%d offset:%d' % (vq(dst), 8 if kg < 9 else 9, (kg % 9) * 4096 + t * 1024)
    def gelu_list(q):
        out = []
        for i in range(3):
            for t in range(4):
                a = P[q % 2] + 16 * i + 4 * t
                n = (i * 4 + t) % 2
                tm = GT + 4 * n; pk = GT + 8 + 2 * n
                R = range(4)
                out += ['v_mul_f32 v%d, v%d, v%d' % (tm + r, a + r, a + r) for r in R]
                out += ['v_fma_f32 v%d, v%d, v%d, v%d' % (tm + r, tm + r, GC + 4 + t, GC + t) for r in R]
                out += ['v_mul_f32 v%d, v%d, v%d' % (tm + r, tm + r, a + r) for r in R]
                out += ['v_exp_f32 v%d, v%d' % (tm + r, tm + r) for r in R]
                out += ['v_fma_f32 v%d, v%d, v%d, v%d' % (tm + r, tm + r, GC + 8 + t, GC + 8 + t) for r in R]
                out += ['v_rcp_f32 v%d, v%d' % (tm + r, tm + r) for r in R]
                out += ['v_mul_f32 v%d, v%d, v%d' % (tm + r, tm + r, a + r) for r in R]
                out += ['v_cvt_pk_bf16_f32 v%d, v%d, v%d' % (pk, tm, tm + 1), 'v_cvt_pk_bf16_f32 v%d, v%d, v%d' % (pk + 1, tm + 2, tm + 3)]
                out += ['ds_write_b64 v%d, %s offset:%d' % (10 + i, vq(pk, 2), q * 24576 + t * 1024)]
        return out
    SF = MLP_OPT['st']
    def epi_pair(A, B, p):
        out = []
        for t in range(4):
            a = A + 4 * t; b = B + 4 * t
            out += ['v_cvt_pk_bf16_f32 v%d, v%d, v%d' % (a, a, a + 1), 'v_cvt_pk_bf16_f32 v%d, v%d, v%d' % (a + 1, a + 2, a + 3),
                    'v_cvt_pk_bf16_f32 v%d, v%d, v%d' % (a + 2, b, b + 1), 'v_cvt_pk_bf16_f32 v%d, v%d, v%d' % (a + 3, b + 2, b + 3),
                    'buffer_store_dwordx4 %s, v15, s[40:43], s%d offen offset:%d%s' % (vq(a), 44 + t, 1024 * p, SF)]
        return out
    def epi_single(A):
        out = []
        for t in range(4):
            a = A + 4 * t
            out += ['v_cvt_pk_bf16_f32 v%d, v%d, v%d' % (a, a, a + 1), 'v_cvt_pk_bf16_f32 v%d, v%d, v%d' % (a + 1, a + 2, a + 3),
                    'buffer_store_dwordx2 %s, v4, s[40:43], s%d offen%s' % (vq(a, 2), 44 + t, SF)]
        return out
    F = Filler(k)
    steps = []
    for q in range(3):
        steps += [('g1', q, j) for j in range(19)]
    steps += [('a', 0, kg) for kg in range(18)] + [('c', 0, kg) for kg in range(18)]
    def xsync(j):
        hi = min(j + 2, 17)
        while st['nx'] <= hi: xload()
        k.wait_vm_seq(xseq[hi])
        if j == 0: k('s_waitcnt lgkmcnt(0)')
        k('s_barrier')
    xsync(0)
    k.stamp()
    for t in range(4): k(x_read(0, t, BF + 4 * t))
    k('v_lshlrev_b32 v4, 2, v3')
    k('v_add_u32 v4, %d, v4' % SA)
    for t in range(4): k('ds_read_b32 v%d, v4 offset:%d' % (GC + 8 + t, 64 * t))
    su = []
    for t in range(4):
        s_ = GC + 8 + t
        su += ['v_mul_f32 v%d, %s, v%d' % (GC + t, f32(GELU_A), s_), 'v_mul_f32 v%d, v%d, v%d' % (GC + 4 + t, s_, s_),
               'v_mul_f32 v%d, v%d, v%d' % (GC + 4 + t, GC + 4 + t, s_), 'v_mul_f32 v%d, %s, v%d' % (GC + 4 + t, f32(GELU_B), GC + 4 + t),
               'v_rcp_f32 v%d, v%d' % (s_, s_)]
    su += ['s_mul_i32 s32, s21, %d' % XB, 's_mul_i32 s31, s22, %d' % (4 * TILE), 's_add_u32 s32, s32, s31',
           's_add_u32 s40, s12, 0x%x' % WS_PART, 's_addc_u32 s41, s13, 0', 's_add_u32 s40, s40, s32', 's_addc_u32 s41, s41, 0',
           's_mov_b32 s42, %d' % (4 * TILE), 's_mov_b32 s43, 0x20000',
           's_lshl_b32 s32, s20, 12', 'v_add_u32 v15, s32, v5',
           's_lshl_b32 s32, s20, 9', 's_add_u32 s32, s32, 16384', 'v_lshl_add_u32 v4, v1, 3, s32']
    su += ['s_mov_b32 s%d, %d' % (44 + t, TILE * t) for t in range(4)]
    F.add('su', su)
    f = 0
    rate = 8.0
    nlines = [len(k.lines)]
    def tick():
        c = sum(cost(l.strip()) if not l.strip().startswith('v_mfma') else 8 for l in k.lines[nlines[0]:])
        nlines[0] = len(k.lines)
        st['est'] += max(16, c)
    st['est'] = 0.0; st['vt'] = st['vt'] - 10 * VM
    for si, (kind, q, j) in enumerate(steps):
        if j == 0 or (kind == 'a' and j == 12): k.stamp()
        if kind == 'g1' and j == 0 and q >= 1:
            F.add(q - 1, gelu_list(q - 1)); rate = F.total() / (228.0 - 6)
        if kind == 'a' and j == 0:
            F.add(2, gelu_list(2)); rate = F.total() / (240.0 - 26)
        if kind == 'c' and j == 0:
            F.add('e', epi_pair(O1, O1 + 16, 0) + epi_pair(O1 + 32, O1 + 48, 1) + epi_single(O1 + 64)); rate = 4.0
        b = BF + 16 * (si % 2); bn = BF + 16 * ((si + 1) % 2)
        nxt = []
        if si + 1 < len(steps):
            k2, q2, j2 = steps[si + 1]
            if k2 == 'g1' and q2 == 0 and j2 % 3 == 0 and j2 < 18: xsync(j2)
            if k2 == 'g1' and j2 == 0 and q2 == 2: F.flush(0)
            if k2 == 'a' and j2 in (0, 12):
                tag = 1 if j2 == 0 else 2
                F.flush(tag)
                k.wait_lg_seq(F.last[tag])
                k('s_barrier')
            nxt = [x_read(j2, t, bn + 4 * t) if k2 == 'g1' else h_read(j2, t, bn + 4 * t) for t in range(4)]
        nt_n = {'g1': 3, 'a': 5, 'c': 4}[kind]
        while st['nf'] < f + nt_n: fload()
        k.wait_vm_seq(fseq[f + nt_n - 1])
        cnt = 0
        for i in range(nt_n):
            w = aq(4 * (f % NR))
            for t in range(4):
                a = vq({'g1': P[q % 2] + 16 * i, 'a': O1 + 16 * i, 'c': O2[i % 4]}[kind] + 4 * t)
                k('v_mfma_f32_16x16x32_bf16 %s, %s, %s, %s' % (a, w, vq(b + 4 * t), a if j else '0'))
                if nxt and cnt % 2 == 0: k(nxt.pop(0))
                cnt += 1
                if t == 3:
                    if st['nx'] < 18 and i == 0: xload()
                    while st['nf'] < len(FR) and st['nf'] - f - 1 < NR - 1 and (st['nf'] - f - 1 < LMIN or st['vt'] < st['est']):
                        if st['vt'] > st['est']: st['est'] = st['vt']
                        fload()
                F.fill(rate)
                tick()
            f += 1
        assert not nxt
    assert f == len(FR) and not F.q
    k.stamp()
    for t in epi_pair(O2[0], O2[1], 2) + epi_pair(O2[2], O2[3], 3): k(t)
    print('mlp est', st['est'], 'vt', st['vt'])
    k.end()
    return k

def gen_red(layer):
    k = K('red%d_kernel' % layer, 256, 256, 0, 136, 136)
    k.begin()
    k('s_load_dwordx2 s[4:5], s[0:1], %d' % KA_B2)
    k('s_load_dwordx2 s[6:7], s[0:1], %d' % KA_OUT)
    k('s_load_dwordx2 s[12:13], s[0:1], %d' % KA_WS)
    k.ids(20)
    decode(k, MAPS['red'])
    k('s_lshl_b32 s23, s22, 2')
    k('s_add_u32 s24, s23, s20')
    k('s_mul_i32 s25, s24, %d' % TILE)
    slice_addr(k, 14, 15, 21)
    k('s_lshr_b32 s40, s21, 2')
    k('s_lshl_b32 s40, s40, 10')
    k('s_and_b32 s41, s21, 3')
    k('s_lshl_b32 s41, s41, 7')
    k('s_add_u32 s40, s40, s41')
    k('s_add_u32 s40, s40, 16384')
    k('v_lshlrev_b32 v4, 3, v3')
    k('v_lshl_add_u32 v4, v2, 9, v4')
    k('v_add_u32 v4, s40, v4')
    k('v_mov_b32 v13, 0x%x' % OOB)
    k('v_cndmask_b32 v13, v13, v4, vcc')
    k('s_waitcnt lgkmcnt(0)')
    k.srd(8, 12, WS_PART, 8 * XB, soff=25)
    k('s_sub_u32 s10, s10, s25')
    S = 16
    for c in range(8):
        d = S + 12 * c
        k('s_mov_b32 s26, %d' % (c * XB))
        k('buffer_load_dwordx4 %s, v14, s[8:11], s26 offen' % vq(d))
        k('buffer_load_dwordx4 %s, v14, s[8:11], s26 offen offset:1024' % vq(d + 4))
        k('buffer_load_dwordx2 %s, v13, s[8:11], s26 offen' % vq(d + 8, 2))
    k.srd(16, 12, WS_XBUF, TILE, soff=25)
    d = S + 96
    k('buffer_load_dwordx4 %s, v14, s[16:19], 0 offen' % vq(d))
    k('buffer_load_dwordx4 %s, v14, s[16:19], 0 offen offset:1024' % vq(d + 4))
    k('buffer_load_dwordx2 %s, v15, s[16:19], 0 offen' % vq(d + 8, 2))
    k.srd(28, 4, 0, 1152)
    k('s_mul_i32 s26, s21, 144')
    k('v_lshlrev_b32 v5, 4, v2')
    k('v_lshlrev_b32 v6, 3, v2')
    k('v_mov_b32 v7, 0x%x' % OOB)
    k('v_cndmask_b32 v7, v7, v6, vcc')
    d = S + 108
    k('buffer_load_dwordx4 %s, v5, s[28:31], s26 offen' % vq(d))
    k('buffer_load_dwordx4 %s, v5, s[28:31], s26 offen offset:64' % vq(d + 4))
    k('buffer_load_dwordx2 %s, v7, s[28:31], s26 offen offset:128' % vq(d + 8, 2))
    if layer == 0:
        k.srd(32, 12, WS_XA, TILE, soff=25)
        k('s_lshl_b32 s27, s24, 10')
        k.srd(36, 12, WS_STA, 1024, soff=27)
        stats_addr(k, 12, 21)
        k.srd(44, 12, WS_KVT, KVT_BYTES)
        for i in range(4): k('v_mov_b32 v%d, 0' % (8 + i))
        k('v_lshlrev_b32 v4, 4, v0')
        k('s_lshl_b32 s27, s2, 12')
        k('s_min_u32 s27, s27, 0x10000')
        k('buffer_store_dwordx4 v[8:11], v4, s[44:47], s27 offen')
    else:
        k('s_mul_i32 s27, s24, %d' % (16 * 1152))
        k('s_add_u32 s27, s27, s26')
        k.srd(32, 6, 0, XB)
        k('v_mul_u32_u24 v4, 1152, v3')
        k('v_add_u32 v14, v4, v5')
        k('v_add_u32 v4, v4, v6')
        k('v_mov_b32 v15, 0x%x' % OOB)
        k('v_cndmask_b32 v15, v15, v4, vcc')
    k('s_mov_b32 s48, 0xffff0000')
    A = 136 - 0
    k.vgpr = k.accum = 160
    for n in range(10):
        x = S + 12 * n
        for i in range(10):
            if n == 0:
                k('v_lshlrev_b32 v%d, 16, v%d' % (A + 2 * i, x + i))
                k('v_and_b32 v%d, s48, v%d' % (A + 2 * i + 1, x + i))
            else:
                k('v_lshlrev_b32 v%d, 16, v%d' % (156 + 2 * (i % 2), x + i))
                k('v_and_b32 v%d, s48, v%d' % (157 + 2 * (i % 2), x + i))
                k('v_add_f32 v%d, v%d, v%d' % (A + 2 * i, A + 2 * i, 156 + 2 * (i % 2)))
                k('v_add_f32 v%d, v%d, v%d' % (A + 2 * i + 1, A + 2 * i + 1, 157 + 2 * (i % 2)))
    for i in range(10): k('v_cvt_pk_bf16_f32 v%d, v%d, v%d' % (S + i, A + 2 * i, A + 2 * i + 1))
    if layer == 0:
        k('buffer_store_dwordx4 %s, v14, s[32:35], 0 offen' % vq(S))
        k('buffer_store_dwordx4 %s, v14, s[32:35], 0 offen offset:1024' % vq(S + 4))
        k('buffer_store_dwordx2 %s, v15, s[32:35], 0 offen' % vq(S + 8, 2))
        stats_out(k, range(A, A + 16), range(A + 16, A + 20), 8, 36, 12)
    else:
        k('buffer_store_dwordx4 %s, v14, s[32:35], s27 offen' % vq(S))
        k('buffer_store_dwordx4 %s, v14, s[32:35], s27 offen offset:64' % vq(S + 4))
        k('buffer_store_dwordx2 %s, v15, s[32:35], s27 offen offset:128' % vq(S + 8, 2))
    k.end()
    return k

def build(kernels, order):
    out = []
    out.append('; generated by dev/gen2.py -- linear attention + mixer MLP, two interleaved layers')
    for k in order: out.append(k.launch_line())
    out.append('.amdgcn_target "amdgcn-amd-amdhsa--gfx950"')
    out.append('.text')
    for k in kernels: out.append(k.text())
    out.append('.section .rodata,"a"')
    for k in kernels: out.append(k.desc())
    return '\n'.join(out)

if __name__ == '__main__':
    if '--stamps' in sys.argv: STAMPS = True
    for a in sys.argv:
        if a.startswith('--map='):
            for kv in a[6:].split(','):
                kk, vv = kv.split(':'); MAPS[kk] = vv
        if a.startswith('--mlp='):
            for kv in a[6:].split(','):
                kk, vv = kv.split(':'); MLP_OPT[kk] = (' ' + vv) if kk == 'st' else int(vv)
    p, q, a, m, r0, r1 = gen_prep(), gen_qkv(), gen_attn(), gen_mlp(), gen_red(0), gen_red(1)
    path = sys.argv[1] if len(sys.argv) > 1 and not sys.argv[1].startswith('--') else 'cdna_kernels/%s.s' % NAME
    open(path, 'w').write(build([p, q, a, m, r0, r1], [p, q, a, m, r0, q, a, m, r1]))
    for k in (p, q, a, m, r0, r1): print(k.label_name, 'lines', len(k.lines), 'nops', k.n_nops)
```

```python
import sys, math, struct
from asmlib import *
from lay import *

NAME = 'interleave_layers__linear_attn_block__mixer_channel_mlp__prompt'
KA_X, KA_WQKV, KA_WO, KA_W1, KA_B1, KA_W2, KA_B2, KA_OUT, KA_DBG, KA_WS = 0, 8, 16, 32, 40, 48, 56, 64, 72, 80
OOB = 0x80000000
STAMPS = False
SFL = {}
LOG2E = 1.4426950408889634

def f32(x):
    return '0x%08x' % struct.unpack('<I', struct.pack('<f', x))[0]

class K(Emitter):
    def __init__(self, label, grid, block, lds, vgpr, accum, sgpr=96):
        super().__init__()
        self.label_name = label; self.grid = grid; self.block = block; self.lds = lds
        self.vgpr = vgpr; self.accum = accum; self.sgpr = sgpr
        self.nst = 0; self.closing = False
    def one(self, text):
        if text.startswith('buffer_store') and self.label_name[:3] in SFL and 'sc1' not in text and not self.closing:
            text = text + ' ' + SFL[self.label_name[:3]]
        return super().one(text)
    def L(self, s):
        return '.L_%s_%s' % (self.label_name, s)
    def begin(self):
        self.raw('.globl %s' % self.label_name)
        self.raw('.p2align 8')
        self.raw('.type %s,@function' % self.label_name)
        self.label(self.label_name)
        self('s_cmp_ge_u32 s2, %d' % self.grid)
        self('s_cbranch_scc1 %s' % self.L('end'))
        if STAMPS:
            self('s_memrealtime s[92:93]')
            self('s_load_dwordx2 s[90:91], s[0:1], %d' % KA_DBG)
        self.stamp()
    def stamp(self):
        if not STAMPS: return
        self('s_memtime s[%d:%d]' % (64 + 2 * self.nst, 65 + 2 * self.nst))
        self.nst += 1
        assert self.nst <= 13
    def end(self):
        self.label(self.L('fin'))
        self.reset_state(); self.closing = True
        if STAMPS and self.nst:
            self.stamp()
            self('s_waitcnt vmcnt(0) lgkmcnt(0)')
            self('s_memtime s[62:63]')
            self('s_memrealtime s[94:95]')
            self('v_lshrrev_b32 v3, 6, v0')
            self('s_nop 1')
            self('v_readfirstlane_b32 s61, v3')
            self('s_waitcnt lgkmcnt(0)')
            self('s_bfe_u32 s60, s90, 0x40009')
            self('s_lshl_b32 s60, s60, 19')
            self.srd(56, 12, WS_STAMP, 0x80000, soff=60)
            self('s_lshl_b32 s60, s2, 2')
            self('s_add_u32 s60, s60, s61')
            self('s_lshl_b32 s60, s60, 7')
            self('v_mov_b32 v1, 0')
            for i in range(self.nst):
                self('v_mov_b32 v2, s%d' % (64 + 2 * i))
                self('buffer_store_dword v2, v1, s[56:59], s60 offen offset:%d' % (4 * i))
            self('v_mov_b32 v2, s62')
            self('buffer_store_dword v2, v1, s[56:59], s60 offen offset:%d' % (4 * self.nst))
            self('v_mov_b32 v2, s94')
            self('buffer_store_dword v2, v1, s[56:59], s60 offen offset:124')
            self('v_mov_b32 v2, s92')
            self('buffer_store_dword v2, v1, s[56:59], s60 offen offset:120')
        self.label(self.L('end'))
        self('s_endpgm')
    def desc(self):
        return '\n'.join(['.p2align 6', '.amdhsa_kernel %s' % self.label_name,
            '  .amdhsa_next_free_vgpr %d' % self.vgpr, '  .amdhsa_next_free_sgpr %d' % self.sgpr,
            '  .amdhsa_accum_offset %d' % self.accum, '  .amdhsa_group_segment_fixed_size 0',
            '  .amdhsa_kernarg_size 88', '  .amdhsa_user_sgpr_count 2',
            '  .amdhsa_user_sgpr_kernarg_segment_ptr 1', '  .amdhsa_system_sgpr_workgroup_id_x 1',
            '.end_amdhsa_kernel']) + '\n'
    def launch_line(self):
        return '; @launch kernel=%s grid=(%d,1,1) block=(%d,1,1) lds=%d' % (self.label_name, self.grid, self.block, self.lds)
    def srd(self, d, base, off, nbytes, soff=None):
        if off:
            self('s_add_u32 s%d, s%d, 0x%x' % (d, base, off))
            self('s_addc_u32 s%d, s%d, 0' % (d + 1, base + 1))
        else:
            self('s_mov_b32 s%d, s%d' % (d, base))
            self('s_mov_b32 s%d, s%d' % (d + 1, base + 1))
        if soff is not None:
            self('s_add_u32 s%d, s%d, s%d' % (d, d, soff))
            self('s_addc_u32 s%d, s%d, 0' % (d + 1, d + 1))
        self('s_mov_b32 s%d, 0x%x' % (d + 2, nbytes))
        self('s_mov_b32 s%d, 0x20000' % (d + 3))
    def ids(self, swave):
        self('v_lshrrev_b32 v4, 6, v0')
        self('v_and_b32 v1, 63, v0')
        self('v_readfirstlane_b32 s%d, v4' % swave)
        self('v_lshrrev_b32 v2, 4, v1')
        self('v_and_b32 v3, 15, v1')
    def sel(self, dst, cond, vtrue, vfalse):
        self('%s vcc, %s' % cond)
        self('v_cndmask_b32 v%d, %s, %s, vcc' % (dst, vfalse, vtrue))

MAPS = dict(qkv='4x2', att='4x2', mlp='2x4', red='c')
def decode(k, mode):
    if mode == 'c':
        k('s_and_b32 s21, s2, 7')
        k('s_lshr_b32 s22, s2, 3')
    elif mode == 'r':
        k('s_bfe_u32 s21, s2, 0x30003')
        k('s_and_b32 s22, s2, 7')
        k('s_lshl_b32 s22, s22, 2')
        k('s_lshr_b32 s23, s2, 6')
        k('s_add_u32 s22, s22, s23')
    elif mode == '2x4':
        k('s_and_b32 s21, s2, 6')
        k('s_bfe_u32 s23, s2, 0x10003')
        k('s_add_u32 s21, s21, s23')
        k('s_and_b32 s22, s2, 1')
        k('s_lshl_b32 s22, s22, 4')
        k('s_lshr_b32 s23, s2, 4')
        k('s_add_u32 s22, s22, s23')
    elif mode == '4x2':
        k('s_and_b32 s21, s2, 4')
        k('s_bfe_u32 s23, s2, 0x20003')
        k('s_add_u32 s21, s21, s23')
        k('s_and_b32 s22, s2, 3')
        k('s_lshl_b32 s22, s22, 3')
        k('s_lshr_b32 s23, s2, 5')
        k('s_add_u32 s22, s22, s23')

def xlane_sum(k, a, t):
    k('v_mov_b32 v%d, v%d' % (t, a))
    k('v_permlane32_swap_b32 v%d, v%d' % (a, t))
    k('v_add_f32 v%d, v%d, v%d' % (a, a, t))
    k('v_mov_b32 v%d, v%d' % (t, a))
    k('v_permlane16_swap_b32 v%d, v%d' % (a, t))
    k('v_add_f32 v%d, v%d, v%d' % (a, a, t))

PR_A, PR_B, PR_C, PR_D, PR_E1, PR_E2, PR_F, PR_N = 0, 144, 288, 360, 387, 499, 539, 571

def gen_prep():
    k = K('prep_kernel', PR_N, 256, 36864, 96, 96)
    k.begin()
    k('s_load_dwordx2 s[12:13], s[0:1], %d' % KA_WS)
    k.ids(20)
    for lab, lo in (('F', PR_F), ('E2', PR_E2), ('E1', PR_E1), ('D', PR_D), ('C', PR_C), ('B', PR_B)):
        k('s_cmp_ge_u32 s2, %d' % lo)
        k('s_cbranch_scc1 %s' % k.L(lab))
    k('s_load_dwordx2 s[4:5], s[0:1], %d' % KA_W1)
    k('s_lshr_b32 s22, s2, 3')
    k('s_and_b32 s23, s2, 7')
    k('s_lshr_b32 s24, s22, 1')
    k('s_mul_i32 s24, s24, 72')
    k('s_and_b32 s25, s22, 1')
    k('s_lshl_b32 s26, s25, 5')
    k('s_add_u32 s24, s24, s26')
    k('s_mul_i32 s25, s25, 288')
    k('s_add_u32 s25, s25, 64')
    k('s_cmp_lt_u32 s22, 16')
    k('s_cselect_b32 s24, s24, s25')
    k('s_cselect_b32 s27, 0, %d' % (64 * 9216))
    k('s_mul_i32 s24, s24, 9216')
    k('s_mul_i32 s25, s23, 1152')
    k('s_add_u32 s24, s24, s25')
    k('s_mov_b32 s26, 8064')
    k('s_waitcnt lgkmcnt(0)')
    k.srd(8, 4, 0, 576 * 9216)
    k('s_branch %s' % k.L('j1'))
    k.label(k.L('B'))
    k.reset_state()
    k('s_load_dwordx2 s[4:5], s[0:1], %d' % KA_W2)
    k('s_sub_u32 s27, s2, %d' % PR_B)
    k('s_mul_i32 s24, s27, 36864')
    k('s_mul_i32 s23, s27, 3641')
    k('s_lshr_b32 s23, s23, 16')
    k('s_mul_i32 s25, s23, 18')
    k('s_sub_u32 s22, s27, s25')
    k('s_mov_b32 s26, 0')
    k('s_mov_b32 s27, 0')
    k('s_waitcnt lgkmcnt(0)')
    k.srd(8, 4, 0, 4608 * 1152)
    k.label(k.L('j1'))
    k.reset_state()
    k('s_mul_i32 s28, s20, 576')
    k('v_add_u32 v5, s28, v1')
    k('s_mul_i32 s29, s20, 9216')
    k('s_mov_b32 s30, 14564')
    for t in range(9):
        k('v_mul_lo_u32 v6, v5, s30')
        k('v_lshrrev_b32 v6, 20, v6')
        k('v_lshrrev_b32 v7, 3, v6')
        k('v_mul_lo_u32 v6, v6, s26')
        k('v_mul_lo_u32 v7, v7, s27')
        k('v_lshl_add_u32 v6, v5, 4, v6')
        k('v_add_u32 v6, v6, v7')
        k('s_add_u32 m0, s29, %d' % (t * 1024))
        k('buffer_load_dwordx4 v6, s[8:11], s24 offen lds')
        k('v_add_u32 v5, 64, v5')
    k('s_lshl_b32 s31, s23, 2')
    k('s_add_u32 s31, s31, s20')
    k('s_mul_i32 s31, s31, %d' % STREAM_WAVE)
    k.srd(16, 12, WS_STREAM, STREAM_WAVE, soff=31)
    k('v_lshlrev_b32 v7, 4, v1')
    k('v_lshrrev_b32 v8, 2, v3')
    k('v_and_b32 v9, 3, v3')
    k('s_waitcnt vmcnt(0)')
    k('s_barrier')
    k('s_cmp_ge_u32 s2, %d' % PR_B)
    k('s_cbranch_scc1 %s' % k.L('t2'))
    k('v_lshl_add_u32 v10, v2, 3, v8')
    k('v_mul_u32_u24 v10, 1152, v10')
    k('v_lshl_add_u32 v10, v9, 3, v10')
    k('s_mul_i32 s32, s20, 96')
    k('v_add_u32 v10, s32, v10')
    k('s_mul_i32 s33, s22, 3072')
    for q in range(3):
        for i in range(3):
            d = 16 + 4 * (3 * q + i)
            k('ds_read_b64_tr_b16 %s, v10 offset:%d' % (vq(d, 2), 384 * q + 32 * i))
            k('ds_read_b64_tr_b16 %s, v10 offset:%d' % (vq(d + 2, 2), 384 * q + 32 * i + 4608))
        for i in range(3):
            d = 16 + 4 * (3 * q + i)
            k('buffer_store_dwordx4 %s, v7, s[16:19], s33 offen offset:%d' % (vq(d), 1024 * i))
        k('s_add_u32 s33, s33, %d' % (54 * 1024))
    k('s_branch %s' % k.L('fin'))
    k.label(k.L('t2'))
    k.reset_state()
    k('v_lshl_add_u32 v10, v2, 2, v8')
    k('v_mul_u32_u24 v10, 1152, v10')
    k('s_lshr_b32 s32, s20, 1')
    k('s_mul_i32 s32, s32, 576')
    k('s_and_b32 s33, s20, 1')
    k('s_lshl_b32 s33, s33, 3')
    k('s_add_u32 s32, s32, s33')
    k('s_add_u32 s32, s32, 128')
    k('v_mul_u32_u24 v11, 144, v9')
    k('v_add3_u32 v11, v11, v10, s32')
    k('s_mul_i32 s32, s20, 288')
    k('v_add_u32 v10, s32, v10')
    k('v_lshl_add_u32 v10, v9, 4, v10')
    k('s_mul_i32 s33, s22, 5120')
    k('s_add_u32 s33, s33, %d' % (162 * 1024))
    k('s_lshl_b32 s34, s22, 12')
    k('s_add_u32 s34, s34, %d' % (252 * 1024))
    k('s_add_u32 s35, s33, 4096')
    for nt in range(9):
        d = 16 + 4 * nt
        p = nt // 2
        a, o = (10, 144 * (p // 2) + 64 * (p % 2) + 8 * (nt % 2)) if nt < 8 else (11, 0)
        k('ds_read_b64_tr_b16 %s, v%d offset:%d' % (vq(d, 2), a, o))
        k('ds_read_b64_tr_b16 %s, v%d offset:%d' % (vq(d + 2, 2), a, o + 18432))
    for nt in range(9):
        d = 16 + 4 * nt
        if nt < 4: k('buffer_store_dwordx4 %s, v7, s[16:19], s33 offen offset:%d' % (vq(d), 1024 * nt))
        elif nt < 8: k('buffer_store_dwordx4 %s, v7, s[16:19], s34 offen offset:%d' % (vq(d), 1024 * (nt - 4)))
        else: k('buffer_store_dwordx4 %s, v7, s[16:19], s35 offen' % vq(d))
    k('s_branch %s' % k.L('fin'))
    k.label(k.L('C'))
    k.reset_state()
    k('s_load_dwordx2 s[4:5], s[0:1], %d' % KA_W1)
    k('s_load_dwordx2 s[6:7], s[0:1], %d' % KA_B1)
    k('s_sub_u32 s22, s2, %d' % PR_C)
    k('s_mov_b32 s26, 9216')
    k('s_waitcnt lgkmcnt(0)')
    k.srd(8, 4, 0, 576 * 9216)
    k.srd(16, 6, 0, 9216)
    k('s_branch %s' % k.L('j2'))
    k.label(k.L('D'))
    k.reset_state()
    k('s_load_dwordx2 s[4:5], s[0:1], %d' % KA_WQKV)
    k('s_sub_u32 s22, s2, %d' % PR_D)
    k('s_mov_b32 s26, 3456')
    k('s_waitcnt lgkmcnt(0)')
    k.srd(8, 4, 0, 576 * 3456)
    k.srd(16, 4, 0, 0)
    k.label(k.L('j2'))
    k.reset_state()
    k('v_lshrrev_b32 v5, 3, v0')
    k('v_mul_lo_u32 v5, v5, s26')
    k('v_and_b32 v6, 7, v0')
    k('v_lshl_add_u32 v5, v6, 4, v5')
    k('s_lshl_b32 s24, s22, 7')
    k('s_lshl_b32 s25, s26, 5')
    k('s_mov_b32 s27, s24')
    for it in range(18):
        k('buffer_load_dwordx4 %s, v5, s[8:11], s27 offen' % vq(16 + 4 * it))
        if it < 17: k('s_add_u32 s27, s27, s25')
    k('v_lshlrev_b32 v7, 1, v0')
    k('buffer_load_ushort v4, v7, s[16:19], s24 offen')
    k('s_mov_b32 s29, 0xffff0000')
    for it in range(18):
        x = 16 + 4 * it
        for i in range(4):
            if it == 0:
                k('v_lshlrev_b32 v%d, 16, v%d' % (8 + 2 * i, x + i))
                k('v_and_b32 v%d, s29, v%d' % (9 + 2 * i, x + i))
            else:
                k('v_lshlrev_b32 v%d, 16, v%d' % (88 + 2 * (i % 2), x + i))
                k('v_and_b32 v%d, s29, v%d' % (89 + 2 * (i % 2), x + i))
                k('v_add_f32 v%d, v%d, v%d' % (8 + 2 * i, 8 + 2 * i, 88 + 2 * (i % 2)))
                k('v_add_f32 v%d, v%d, v%d' % (9 + 2 * i, 9 + 2 * i, 89 + 2 * (i % 2)))
    k('v_lshlrev_b32 v6, 5, v0')
    k('ds_write_b128 v6, v[8:11]')
    k('ds_write_b128 v6, v[12:15] offset:16')
    k('s_waitcnt lgkmcnt(0)')
    k('s_barrier')
    k('s_cmp_lg_u32 s20, 0')
    k('s_cbranch_scc1 %s' % k.L('fin'))
    k('v_lshlrev_b32 v6, 2, v0')
    for i in range(32): k('ds_read_b32 v%d, v6 offset:%d' % (16 + i, 256 * i))
    for i in range(16): k('v_add_f32 v%d, v%d, v%d' % (16 + i, 16 + i, 32 + i))
    for n in (8, 4, 2, 1):
        for i in range(n): k('v_add_f32 v%d, v%d, v%d' % (16 + i, 16 + i, 16 + n + i))
    k('v_cvt_pk_bf16_f32 v8, v16, v16')
    k('v_and_b32 v17, s29, v8')
    k('v_sub_f32 v17, v16, v17')
    k('v_cvt_pk_bf16_f32 v9, v17, v17')
    k('v_lshl_or_b32 v10, v4, 16, v4')
    k('v_mov_b32 v11, v4')
    k('s_lshl_b32 s24, s22, 6')
    k('v_add_u32 v5, s24, v0')
    k('s_cmp_ge_u32 s2, %d' % PR_D)
    k('s_cbranch_scc1 %s' % k.L('D2'))
    k.srd(16, 12, WS_AUG1, 4608 * 16)
    k('v_lshlrev_b32 v5, 4, v5')
    k('buffer_store_dwordx4 v[8:11], v5, s[16:19], 0 offen')
    k('s_branch %s' % k.L('fin'))
    k.label(k.L('D2'))
    k.reset_state()
    k.srd(16, 12, WS_AUGQ, 8 * 14 * 256)
    k('v_mul_u32_u24 v12, 7282, v5')
    k('v_lshrrev_b32 v12, 22, v12')
    k('v_mul_u32_u24 v13, 576, v12')
    k('v_sub_u32 v13, v5, v13')
    k('v_mul_u32_u24 v14, 3641, v13')
    k('v_lshrrev_b32 v14, 16, v14')
    k('v_mul_u32_u24 v15, 18, v14')
    k('v_sub_u32 v15, v13, v15')
    k('v_and_b32 v16, 3, v14')
    k('v_lshrrev_b32 v14, 2, v14')
    k('v_add_u32 v17, -1, v12')
    k('v_cmp_eq_u32 vcc, 0, v12')
    k('v_mov_b32 v18, 2')
    k('v_cndmask_b32 v18, v17, v18, vcc')
    k('v_mul_u32_u24 v19, 3, v16')
    k('v_add_u32 v18, v18, v19')
    k('v_lshl_add_u32 v18, v18, 4, v15')
    k('v_lshl_add_u32 v19, v16, 1, v15')
    k('v_add_u32 v19, %d, v19' % (13 * 16 - 16))
    k('v_lshl_add_u32 v20, v16, 1, v17')
    k('v_lshl_add_u32 v20, v20, 1, v15')
    k('v_add_u32 v20, %d, v20' % (12 * 16 - 16))
    k('v_cndmask_b32 v19, v20, v19, vcc')
    k('v_cmp_gt_u32 vcc, 16, v15')
    k('v_cndmask_b32 v18, v19, v18, vcc')
    k('v_mul_u32_u24 v14, 224, v14')
    k('v_add_lshl_u32 v5, v14, v18, 4')
    k('buffer_store_dwordx4 v[8:11], v5, s[16:19], 0 offen')
    k('s_branch %s' % k.L('fin'))
    def gather(stride, rows_a, rows_b, srow_a, it_rows, srow_b):
        k('s_mul_i32 s34, s%d, %d' % (srow_a, stride))
        k('s_mul_i32 s35, s%d, %d' % (srow_b, stride))
        for it in range(5):
            for s in range(8):
                r = (rows_a[s] + it_rows * it) if it < 4 else rows_b[s]
                k('s_add_u32 s36, s%d, %d' % (34 if it < 4 else 35, r * stride))
                k('buffer_load_ushort v%d, v%d, s[8:11], s36 offen' % (16 + 8 * it + s, 5 if it < 4 else 6))
        for it in range(5):
            for i in range(4):
                k('v_lshl_or_b32 v%d, v%d, 16, v%d' % (56 + 4 * it + i, 17 + 8 * it + 2 * i, 16 + 8 * it + 2 * i))
            if it < 4:
                k('buffer_store_dwordx4 %s, v7, s[16:19], s30 offen' % vq(56 + 4 * it))
                k('s_add_u32 s30, s30, s31')
            else:
                k('buffer_store_dwordx4 %s, v12, s[16:19], s33 offen' % vq(56 + 4 * it))
        k('s_branch %s' % k.L('fin'))
    k.label(k.L('E1'))
    k.reset_state()
    k('s_load_dwordx2 s[4:5], s[0:1], %d' % KA_WQKV)
    k('s_sub_u32 s22, s2, %d' % PR_E1)
    k('s_mul_i32 s23, s22, 4682')
    k('s_lshr_b32 s23, s23, 16')
    k('s_mul_i32 s24, s23, 14')
    k('s_sub_u32 s22, s22, s24')
    k('s_mul_i32 s24, s23, 72')
    k('v_lshlrev_b32 v7, 4, v1')
    k('s_cmp_ge_u32 s22, 12')
    k('s_cbranch_scc1 %s' % k.L('E1L'))
    k('s_mul_i32 s25, s22, 43')
    k('s_lshr_b32 s25, s25, 7')
    k('s_mul_i32 s26, s25, 3')
    k('s_sub_u32 s26, s22, s26')
    k('s_add_u32 s27, s26, 1')
    k('s_mul_i32 s27, s27, 576')
    k('s_cmp_eq_u32 s26, 2')
    k('s_cselect_b32 s27, 0, s27')
    k('s_cselect_b32 s28, 1, 2')
    k('s_cselect_b32 s29, 36, s26')
    k('s_lshl_b32 s28, s28, 10')
    k('s_lshl_b32 s29, s29, 10')
    k('s_add_u32 s24, s24, s27')
    k('s_mul_i32 s27, s25, 18')
    k('s_add_u32 s24, s24, s27')
    k('v_add_u32 v8, s24, v3')
    k('s_lshl_b32 s27, s23, 2')
    k('s_add_u32 s27, s27, s25')
    k('s_mul_i32 s27, s27, %d' % WQS_WAVE)
    k('s_add_u32 s27, s27, %d' % WS_WQS)
    k('s_branch %s' % k.L('E1J'))
    k.label(k.L('E1L'))
    k.reset_state()
    k('s_mul_i32 s27, s23, %d' % WQL_C)
    k('s_add_u32 s27, s27, %d' % WS_WQL)
    k('v_and_b32 v9, 1, v3')
    k('s_add_u32 s24, s24, 16')
    k('s_cmp_eq_u32 s22, 13')
    k('s_cbranch_scc1 %s' % k.L('E1Q'))
    k('v_lshrrev_b32 v8, 2, v3')
    k('v_mul_u32_u24 v8, 18, v8')
    k('v_bfe_u32 v10, v3, 1, 1')
    k('v_mul_u32_u24 v10, 576, v10')
    k('v_add3_u32 v8, v8, v9, v10')
    k('s_add_u32 s24, s24, 576')
    k('v_add_u32 v8, s24, v8')
    k('s_mov_b32 s28, 1024')
    k('s_mov_b32 s29, 0')
    k('s_branch %s' % k.L('E1J'))
    k.label(k.L('E1Q'))
    k.reset_state()
    k('v_bfe_u32 v8, v3, 1, 2')
    k('v_mul_u32_u24 v8, 18, v8')
    k('v_add3_u32 v8, v8, v9, s24')
    k('s_mov_b32 s28, 512')
    k('s_mov_b32 s29, 18432')
    k('v_lshl_add_u32 v7, v2, 3, v3')
    k('v_lshlrev_b32 v7, 4, v7')
    k('v_mov_b32 v10, 0x%x' % OOB)
    k('v_cmp_gt_u32 vcc, 8, v3')
    k('v_cndmask_b32 v7, v10, v7, vcc')
    k.label(k.L('E1J'))
    k.reset_state()
    k('s_waitcnt lgkmcnt(0)')
    k.srd(8, 4, 0, 576 * 3456)
    k.srd(16, 12, 0, WQS_WAVE, soff=27)
    k('v_mul_u32_u24 v5, %d, v2' % (8 * 3456))
    k('v_lshl_add_u32 v5, v8, 1, v5')
    k('v_mul_u32_u24 v6, %d, v2' % (72 * 3456))
    k('v_lshl_add_u32 v6, v8, 1, v6')
    def common_rows():
        k('s_mul_i32 s30, s20, s28')
        k('s_add_u32 s30, s30, s29')
        k('s_lshl_b32 s31, s28, 2')
        k('s_lshl_b32 s33, s28, 4')
        k('s_add_u32 s33, s33, s30')
        k('v_mov_b32 v12, 0x%x' % OOB)
        k('s_cmp_lt_u32 s20, 2')
        k('s_cselect_b64 vcc, -1, 0')
        k('v_cndmask_b32 v12, v12, v7, vcc')
        k('s_lshr_b32 s37, s20, 1')
        k('s_and_b32 s38, s20, 1')
    common_rows()
    k('s_mul_i32 s37, s37, 72')
    k('s_lshl_b32 s39, s38, 5')
    k('s_add_u32 s37, s37, s39')
    k('s_mul_i32 s38, s38, 288')
    k('s_add_u32 s38, s38, 64')
    gather(3456, list(range(8)), list(range(8)), 37, 144, 38)
    k.label(k.L('E2'))
    k.reset_state()
    k('s_load_dwordx2 s[4:5], s[0:1], %d' % KA_WO)
    k('s_sub_u32 s22, s2, %d' % PR_E2)
    k('s_mul_i32 s23, s22, 52')
    k('s_lshr_b32 s23, s23, 8')
    k('s_mul_i32 s24, s23, 5')
    k('s_sub_u32 s22, s22, s24')
    k('s_mul_i32 s24, s23, 72')
    k('s_mul_i32 s27, s23, %d' % WOS_C)
    k('s_add_u32 s27, s27, %d' % WS_WOS)
    k('v_lshlrev_b32 v7, 4, v1')
    k('s_cmp_eq_u32 s22, 4')
    k('s_cbranch_scc1 %s' % k.L('E2L'))
    k('s_lshr_b32 s25, s22, 1')
    k('s_lshl_b32 s25, s25, 5')
    k('s_and_b32 s26, s22, 1')
    k('s_lshl_b32 s26, s26, 2')
    k('s_add_u32 s24, s24, s25')
    k('s_add_u32 s24, s24, s26')
    k('v_lshrrev_b32 v8, 2, v3')
    k('v_lshlrev_b32 v8, 3, v8')
    k('v_and_b32 v9, 3, v3')
    k('v_add3_u32 v8, v8, v9, s24')
    k('s_mov_b32 s28, 4096')
    k('s_lshl_b32 s29, s22, 10')
    k('s_branch %s' % k.L('E2J'))
    k.label(k.L('E2L'))
    k.reset_state()
    k('v_and_b32 v8, 7, v3')
    k('s_add_u32 s24, s24, 64')
    k('v_add_u32 v8, s24, v8')
    k('s_mov_b32 s28, 512')
    k('s_mov_b32 s29, 73728')
    k('v_lshl_add_u32 v7, v2, 3, v3')
    k('v_lshlrev_b32 v7, 4, v7')
    k('v_mov_b32 v10, 0x%x' % OOB)
    k('v_cmp_gt_u32 vcc, 8, v3')
    k('v_cndmask_b32 v7, v10, v7, vcc')
    k.label(k.L('E2J'))
    k.reset_state()
    k('s_waitcnt lgkmcnt(0)')
    k.srd(8, 4, 0, 576 * 1152)
    k.srd(16, 12, 0, WOS_C, soff=27)
    k('v_mul_u32_u24 v5, %d, v2' % (4 * 1152))
    k('v_lshl_add_u32 v5, v8, 1, v5')
    k('v_mul_u32_u24 v6, %d, v2' % (18 * 1152))
    k('v_lshl_add_u32 v6, v8, 1, v6')
    common_rows()
    k('s_mul_i32 s37, s20, 36')
    k('s_mul_i32 s38, s38, 288')
    k('s_add_u32 s38, s38, 16')
    gather(1152, [0, 1, 2, 3, 18, 19, 20, 21], [0, 1, 72, 73, 144, 145, 216, 217], 37, 144, 38)
    k.label(k.L('F'))
    k.reset_state()
    k('s_load_dwordx2 s[4:5], s[0:1], %d' % KA_X)
    k('s_sub_u32 s22, s2, %d' % PR_F)
    k('s_lshl_b32 s23, s22, 2')
    k('s_add_u32 s23, s23, s20')
    k('s_mul_i32 s24, s23, 18432')
    k('v_mul_u32_u24 v5, 1152, v3')
    k('v_mul_u32_u24 v6, 144, v2')
    k('v_add_u32 v6, v6, v5')
    k('v_add_u32 v6, 128, v6')
    k('v_lshl_add_u32 v5, v2, 4, v5')
    k('v_lshlrev_b32 v7, 4, v1')
    k('s_waitcnt lgkmcnt(0)')
    k.srd(8, 4, 0, XB)
    X = 16
    for j in range(18):
        if j < 16: k('buffer_load_dwordx4 %s, v5, s[8:11], s24 offen offset:%d' % (vq(X + 4 * j), 144 * (j // 2) + 64 * (j % 2)))
        else: k('buffer_load_dwordx4 %s, v6, s[8:11], s24 offen offset:%d' % (vq(X + 4 * j), 576 * (j - 16)))
    k.srd(16, 12, WS_KVT, KVT_BYTES)
    for i in range(4): k('v_mov_b32 v%d, 0' % (8 + i))
    k('v_lshlrev_b32 v4, 4, v0')
    k('s_lshl_b32 s25, s22, 12')
    k('buffer_store_dwordx4 v[8:11], v4, s[16:19], s25 offen')
    k.srd(16, 12, WS_XA, TILE, soff=24)
    for i in range(4): k('v_mov_b32 v%d, 0x3f803f80' % (8 + i))
    for j in range(18):
        x = vq(X + 4 * j)
        if j % 4 == 0: k('s_mov_b32 s25, %d' % (j * 1024))
        k('buffer_store_dwordx4 %s, v7, s[16:19], s25 offen offset:%d' % (x, (j % 4) * 1024))
        k('v_mfma_f32_16x16x32_bf16 v[12:15], v[8:11], %s, %s' % (x, 'v[12:15]' if j else '0'))
        k('v_mfma_f32_16x16x32_bf16 v[88:91], %s, %s, %s' % (x, x, 'v[88:91]' if j else '0'))
    k('v_lshlrev_b32 v4, 2, v2')
    k('v_sub_u32 v4, v3, v4')
    k('v_mov_b32 v13, 0')
    for r in range(4):
        k('v_cmp_eq_u32 vcc, %d, v4' % r)
        k('v_cndmask_b32 v13, v13, v%d, vcc' % (88 + r))
    xlane_sum(k, 13, 14)
    k('v_mov_b32 v14, 0')
    k('v_mov_b32 v15, 0')
    k('v_cmp_eq_u32 vcc, 0, v2')
    k('v_cndmask_b32 v12, v14, v12, vcc')
    k('v_cndmask_b32 v13, v14, v13, vcc')
    k('s_lshl_b32 s24, s23, 10')
    k.srd(16, 12, WS_STA, 1024, soff=24)
    k('buffer_store_dwordx4 v[12:15], v7, s[16:19], 0 offen')
    k.end()
    return k

XT = 19456

def stats_to_lds(k, st, tmp, double, vaug, vs):
    a, b, t0, t1 = st, st + 1, st + 2, st + 3
    k('v_add_f32 v%d, v%d, v%d' % (a, a, t0))
    k('v_add_f32 v%d, v%d, v%d' % (b, b, t1))
    xlane_sum(k, a, t0)
    xlane_sum(k, b, t1)
    inv = f32(1.0 / 576.0)
    k('v_mul_f32 v%d, %s, v%d' % (a, f32(-1.0 / 576.0), a))
    k('v_mul_f32 v%d, %s, v%d' % (b, inv, b))
    k('v_fma_f32 v%d, -v%d, v%d, v%d' % (b, a, a, b))
    k('v_max_f32 v%d, 0, v%d' % (b, b))
    k('v_add_f32 v%d, %s, v%d' % (t0, f32(1e-5), b))
    k('v_rsq_f32 v%d, v%d' % (t0, t0))
    if double:
        k('v_mul_f32 v%d, v%d, v%d' % (b, b, t0))
        k('v_mul_f32 v%d, v%d, v%d' % (b, b, t0))
        k('v_add_f32 v%d, %s, v%d' % (b, f32(1e-5), b))
        k('v_rsq_f32 v%d, v%d' % (b, b))
        k('v_mul_f32 v%d, v%d, v%d' % (t0, t0, b))
    k('ds_write_b32 v%d, v%d' % (vs, t0))
    k('v_rcp_f32 v%d, v%d' % (b, t0))
    q = tmp
    k('v_cvt_pk_bf16_f32 v%d, v%d, v%d' % (t1, a, a))
    k('v_lshlrev_b32 v%d, 16, v%d' % (t1, t1))
    k('v_sub_f32 v%d, v%d, v%d' % (t1, a, t1))
    k('v_cvt_pk_bf16_f32 v%d, v%d, v%d' % (q, a, t1))
    k('v_cvt_pk_bf16_f32 v%d, v%d, v%d' % (t1, b, b))
    k('v_lshlrev_b32 v%d, 16, v%d' % (t1, t1))
    k('v_sub_f32 v%d, v%d, v%d' % (t1, b, t1))
    k('v_cvt_pk_bf16_f32 v%d, v%d, v%d' % (q + 2, b, t1))
    k('v_and_b32 v%d, 0xffff0000, v%d' % (a, q + 2))
    k('v_sub_f32 v%d, v%d, v%d' % (t1, t1, a))
    k('v_mov_b32 v%d, 0' % a)
    k('v_cvt_pk_bf16_f32 v%d, v%d, v%d' % (q + 3, t1, a))
    k('v_cmp_eq_u32 vcc, 0, v2')
    k('v_cndmask_b32 v%d, v%d, v%d, vcc' % (q, a, q))
    k('v_cndmask_b32 v%d, v%d, v%d, vcc' % (q + 2, a, q + 2))
    k('v_cndmask_b32 v%d, v%d, v%d, vcc' % (q + 3, a, q + 3))
    k('v_mov_b32 v%d, v%d' % (q + 1, q))
    return k.one('ds_write_b128 v%d, %s' % (vaug, vq(q)))

def cost(t):
    mn = t.split()[0]
    if mn in TRANS: return 8
    if mn.startswith('ds_write_b64'): return 6
    if mn.startswith('ds_write_b128'): return 12
    if mn.startswith(('v_fma', 'v_cvt_pk', 'v_cndmask')) : return 5
    return 4

class Filler:
    def __init__(self, k):
        self.k = k; self.q = []; self.budget = 0.0; self.last = {}
    def add(self, tag, lst):
        self.q.extend((tag, t) for t in lst)
    def emit(self):
        tag, t = self.q.pop(0)
        s = self.k.one(t)
        if t.startswith(('ds_', 'buffer_')): self.last[tag] = s
        return cost(t)
    def fill(self, rate):
        self.budget += rate
        while self.q and self.budget >= cost(self.q[0][1]) * 0.5:
            self.budget -= self.emit()
        if not self.q: self.budget = min(self.budget, 0.0)
    def flush(self, tag=None):
        while self.q and (tag is None or any(x[0] == tag for x in self.q)):
            self.emit()
    def total(self):
        return sum(cost(t) for _, t in self.q)

def phi_list(a, sc, kc, tmp):
    n = len(a)
    out = []
    out += ['v_mul_f32 v%d, v%d, v%d' % (tmp + i, a[i], kc[i]) for i in range(n)]
    out += ['v_max_f32 v%d, 0, v%d' % (a[i], a[i]) for i in range(n)]
    out += ['v_exp_f32 v%d, v%d clamp' % (tmp + i, tmp + i) for i in range(n)]
    out += ['v_fma_f32 v%d, v%d, v%d, s31' % (a[i], a[i], sc[i]) for i in range(n)]
    out += ['v_add_f32 v%d, v%d, v%d' % (a[i], a[i], tmp + i) for i in range(n)]
    return out

QKV_LEAD = 10
def gen_qkv():
    XI = 0; WL = 4 * XT; SA = WL + WQL_C; LX = SA + 256
    k = K('qkv_kernel', 256, 256, LX + 2048, 256 + 236, 256)
    k.begin()
    k('s_load_dwordx2 s[12:13], s[0:1], %d' % KA_WS)
    k.ids(20)
    decode(k, MAPS['qkv'])
    k('s_lshl_b32 s23, s22, 2')
    k('s_add_u32 s24, s23, s20')
    k('v_lshlrev_b32 v5, 4, v1')
    k('s_lshl_b32 s25, s24, 10')
    k('s_mul_i32 s26, s24, %d' % TILE)
    k('s_lshl_b32 s27, s21, 2')
    k('s_add_u32 s27, s27, s20')
    k('s_mul_i32 s28, s27, %d' % WQS_WAVE)
    k('s_mul_i32 s29, s21, %d' % WQL_C)
    k('s_mul_i32 s30, s20, %d' % XT)
    k('s_lshl_b32 s32, s20, 10')
    k('s_add_u32 s33, s32, %d' % WL)
    k('s_waitcnt lgkmcnt(0)')
    k.srd(4, 12, WS_STA, 1024, soff=25)
    ST = 28
    k('buffer_load_dwordx4 %s, v5, s[4:7], 0 offen' % vq(ST))
    k.srd(8, 12, WS_XA, TILE, soff=26)
    k.srd(16, 12, WS_WQS, WQS_WAVE, soff=28)
    k.srd(36, 12, WS_WQL, WQL_C, soff=29)
    xseq = {}; lseq = {}; wseq = {}
    def xload(j):
        if j % 4 == 0:
            k('s_add_u32 m0, s30, %d' % (j * 1024))
            k('s_mov_b32 s34, %d' % (j * 1024))
        xseq[j] = k.one('buffer_load_dwordx4 v5, s[8:11], s34 offen offset:%d lds' % ((j % 4) * 1024))
    def lload(n):
        k('s_add_u32 m0, s33, %d' % (n * 4096))
        k('s_add_u32 s35, s32, %d' % (n * 4096))
        lseq[n] = k.one('buffer_load_dwordx4 v5, s[36:39], s35 offen lds')
    def wload(f):
        if f % 4 == 0: k('s_mov_b32 s40, %d' % (f * 1024))
        wseq[f] = k.one('buffer_load_dwordx4 %s, v5, s[16:19], s40 offen offset:%d' % (aq(4 * f), (f % 4) * 1024))
    prog = []
    lq_need = {0: [0, 4], 1: [1, 5], 2: [2], 3: [3, 6], 4: []}
    for G in range(5):
        js = list(range(4 * G, min(4 * G + 4, 18)))
        prog += [('x', j) for j in js] + [('l', n) for n in lq_need[G]] + [('w', f) for j in js for f in (2 * j, 2 * j + 1)]
    prog += [('aug', 0)] + [('w', 36 + j) for j in range(18)]
    AUG = 216
    def augload():
        k('s_mul_i32 s59, s21, %d' % (14 * 256))
        k.srd(4, 12, WS_AUGQ, 14 * 256, soff=59)
        k('s_mul_i32 s59, s20, 768')
        for i in range(3): k('buffer_load_dwordx4 %s, v6, s[4:7], s59 offen offset:%d' % (aq(AUG + 4 * i), 256 * i))
        k('buffer_load_dwordx4 %s, v6, s[4:7], 0 offen offset:%d' % (aq(AUG + 12), 256 * 12))
        k('buffer_load_dwordx4 %s, v7, s[4:7], 0 offen offset:%d' % (aq(AUG + 16), 256 * 13))
    pi = [0]
    def issue(n):
        for _ in range(n):
            if pi[0] >= len(prog): return
            kind, a = prog[pi[0]]; pi[0] += 1
            if kind == 'x': xload(a)
            elif kind == 'l': lload(a)
            elif kind == 'w': wload(a)
            else: augload()
    issue(14)
    k('v_mov_b32 v8, 0x%x' % OOB)
    k('v_cmp_gt_u32 vcc, 16, v1')
    k('v_cndmask_b32 v6, v8, v5, vcc')
    k('v_and_b32 v7, 0x7f, v5')
    k('v_cndmask_b32 v7, v8, v7, vcc')
    for s in range(4):
        k('s_add_u32 s%d, s20, %d' % (44 + s, s))
        k('s_and_b32 s%d, s%d, 3' % (44 + s, 44 + s))
        k('s_mul_i32 s42, s%d, %d' % (44 + s, XT))
        k('v_add_u32 v%d, s42, v5' % (10 + s))
    k('v_add_u32 v14, %d, v5' % WL)
    k('v_and_b32 v15, 7, v3')
    k('v_lshl_add_u32 v15, v2, 3, v15')
    k('v_lshlrev_b32 v15, 4, v15')
    k('v_add_u32 v15, %d, v15' % (WL + 18432))
    k('v_add_u32 v16, %d, v10' % (18 * 1024))
    k('s_lshl_b32 s42, s20, 6')
    k('s_add_u32 s42, s42, %d' % SA)
    k('v_lshl_add_u32 v17, v3, 2, s42')
    k('s_mov_b32 s31, %s' % f32(1e-6))
    issue(6)
    k.stamp()
    stats_to_lds(k, ST, 32, False, 16, 17)
    AK = 64; AV = 80; AQ = 96; AL = 112; ALQ = 116
    BF = 120
    SC = 168
    T = 208; PK = 32; PV = 48; LL = 216; LP = 224; DD = 232
    def reads(j, ph, b):
        out = ['ds_read_b128 %s, v%d offset:%d' % (vq(b + 4 * s), 10 + s, j * 1024) for s in range(4)]
        if ph == 0 and j < 18:
            out.append('ds_read_b128 %s, v14 offset:%d' % (vq(b + 16), j * 1024))
            out.append('ds_read_b128 %s, v15 offset:%d' % (vq(b + 20), j * 512))
        return out
    def sync(G):
        js = range(4 * G, min(4 * G + 4, 18))
        need = max([xseq[j] for j in js] + [lseq[n] for n in lq_need[G]])
        k.wait_vm_seq(need)
        if G == 0: k('s_waitcnt lgkmcnt(0)')
        k('s_barrier')
    F = Filler(k)
    steps = [(0, j) for j in range(19)] + [(1, j) for j in range(19)]
    need = []
    for ph, j in steps:
        it = ('w', 2 * j + 1) if ph == 0 and j < 18 else ('aug', 0) if ph == 0 else ('w', 36 + min(j, 17))
        need.append(prog.index(it))
    sync(0)
    k.stamp()
    for t in reads(0, 0, BF): k(t)
    for s in range(4):
        k('s_lshl_b32 s42, s%d, 6' % (44 + s))
        k('s_add_u32 s42, s42, %d' % SA)
        k('v_lshl_add_u32 v8, v3, 2, s42')
        k('v_lshl_add_u32 v9, v2, 4, s42')
        k('ds_read_b32 v%d, v8' % (SC + s))
        k('ds_read_b128 %s, v9' % vq(SC + 8 + 4 * s))
    F.add('sc', ['v_mul_f32 v%d, %s, v%d' % (SC + 4 + s, f32(LOG2E), SC + s) for s in range(4)])
    F.add('sc', ['v_mul_f32 v%d, %s, v%d' % (SC + 24 + s, f32(LOG2E), SC + 8 + s) for s in range(16)])
    ea = []
    ea += ['s_mul_i32 s41, s27, %d' % KVH]
    ea += ['s_add_u32 s48, s12, 0x%x' % WS_KVT, 's_addc_u32 s49, s13, 0', 's_add_u32 s48, s48, s41', 's_addc_u32 s49, s49, 0', 's_mov_b32 s50, %d' % KVH, 's_mov_b32 s51, 0x20000']
    ea += ['v_lshlrev_b32 v18, 2, v1']
    ea += ['v_lshrrev_b32 v8, 1, v3', 's_lshl_b32 s41, s20, 1', 'v_cmp_eq_u32 s[52:53], s41, v8', 'v_cmp_eq_u32 s[54:55], s20, v2',
           'v_and_b32 v9, 1, v3', 'v_lshlrev_b32 v9, 2, v9', 'v_mov_b32 v8, 0x%x' % OOB,
           'v_lshl_add_u32 v19, v2, 3, v9', 'v_add_u32 v19, 1024, v19', 'v_cndmask_b32 v19, v8, v19, s[52:53]',
           'v_lshlrev_b32 v20, 2, v3', 'v_add_u32 v20, 1152, v20', 'v_cndmask_b32 v20, v8, v20, s[54:55]',
           'v_add_u32 v21, 1344, v9', 'v_cndmask_b32 v21, v8, v21, s[52:53]', 'v_cndmask_b32 v21, v8, v21, s[54:55]',
           'v_lshlrev_b32 v22, 3, v1', 'v_cmp_gt_u32 vcc, 32, v1', 'v_cndmask_b32 v23, v8, v22, vcc',
           'v_and_b32 v9, 2, v3', 'v_cmp_eq_u32 s[56:57], 0, v9',
           's_lshl_b32 s41, s20, 9', 's_add_u32 s41, s41, %d' % LX, 'v_add_u32 v24, s41, v22']
    for s in range(1, 4):
        ea += ['s_lshl_b32 s41, s%d, 9' % (44 + s), 's_add_u32 s41, s41, %d' % LX, 'v_add_u32 v%d, s41, v22' % (24 + s)]
    F.add('ea', ea)
    for si, (ph, j) in enumerate(steps):
        b = BF + 24 * (si % 2); bn = BF + 24 * ((si + 1) % 2)
        nxt = []
        if si + 1 < len(steps):
            ph2, j2 = steps[si + 1]
            if ph2 == 0 and j2 % 4 == 0 and j2 < 18:
                while max([-1] + list(xseq)) < min(j2 + 3, 17) or any(n not in lseq for n in lq_need[j2 // 4]): issue(1)
                sync(j2 // 4)
            nxt = reads(j2, ph2, bn)
        if ph == 0:
            fr = [2 * j, 2 * j + 1] if j < 18 else None
            wk = aq(8 * j) if j < 18 else aq(AUG); wv = aq(8 * j + 4) if j < 18 else aq(AUG + 4)
            wl = vq(b + 16) if j < 18 else aq(AUG + 12); wq = vq(b + 20) if j < 18 else aq(AUG + 16)
            mf = [(AK + 4 * s, vq(b + 4 * s), wk) for s in range(4)] + [(AV + 4 * s, vq(b + 4 * s), wv) for s in range(4)]
            mf += [(AL, vq(b), wl), (ALQ, wq, vq(b))]
        else:
            fr = [36 + j] if j < 18 else None
            wq = aq(144 + 4 * j) if j < 18 else aq(AUG + 8)
            mf = [(AQ + 4 * s, wq, vq(b + 4 * s)) for s in range(4)]
        while pi[0] <= need[si]: issue(1)
        todo = max(0, min(len(prog), need[min(si + 1, len(steps) - 1)] + 1 + QKV_LEAD) - pi[0])
        if ph == 1 and j == 0:
            k.stamp()
            F.flush()
            ep = []
            RS = SC + 8; RK = SC + 24
            a = [AL + r for r in range(4)]
            ep += ['v_mul_f32 v%d, v%d, v%d' % (T + 4 + r, a[r], RS + r) for r in range(4)]
            ep += phi_list(a, [RS + r for r in range(4)], [RK + r for r in range(4)], T)
            ep += ['v_cndmask_b32 v%d, v%d, v%d, s[56:57]' % (a[r], T + 4 + r, a[r]) for r in range(4)]
            ep += ['v_cvt_pk_bf16_f32 v%d, v%d, v%d' % (LL, a[0], a[1]), 'v_cvt_pk_bf16_f32 v%d, v%d, v%d' % (LL + 1, a[2], a[3])]
            ep += ['ds_write_b64 v24, %s' % vq(LL, 2)]
            F.add('lx', ep)
            ep = []
            for s in range(4):
                a = [AK + 4 * s + r for r in range(4)]
                ep += phi_list(a, [RS + 4 * s + r for r in range(4)], [RK + 4 * s + r for r in range(4)], T + 4 * (s % 2))
                ep += ['v_cvt_pk_bf16_f32 v%d, v%d, v%d' % (PK + 2 * s, a[0], a[1]), 'v_cvt_pk_bf16_f32 v%d, v%d, v%d' % (PK + 2 * s + 1, a[2], a[3])]
            for s in range(4):
                a = [AV + 4 * s + r for r in range(4)]
                ep += ['v_mul_f32 v%d, v%d, v%d' % (a[r], a[r], RS + 4 * s + r) for r in range(4)]
                ep += ['v_cvt_pk_bf16_f32 v%d, v%d, v%d' % (PV + 2 * s, a[0], a[1]), 'v_cvt_pk_bf16_f32 v%d, v%d, v%d' % (PV + 2 * s + 1, a[2], a[3])]
            F.add('kv', ep)
            rate1 = F.total() / (4 * 11.0)
        if ph == 1 and j == 4:
            F.flush('lx')
            k.wait_lg_seq(F.last['lx'])
            k('s_barrier')
            for s in range(1, 4): k('ds_read_b64 %s, v%d' % (vq(LL + 2 * s, 2), 24 + s))
        if ph == 1 and j == 11:
            F.flush()
            k('v_mov_b32 v%d, 0x3f803f80' % T)
            for i in range(8): k('v_cndmask_b32 v%d, v%d, v%d, s[56:57]' % (LP + i, LL + i, T))
            for n, (A, B) in enumerate(((PV, PK), (PV, LL), (LP, PK), (LP, LL))):
                k('v_mfma_f32_16x16x32_bf16 %s, %s, %s, 0' % (vq(DD + 4 * n), vq(A), vq(B)))
            for n, (A, B) in enumerate(((PV, PK), (PV, LL), (LP, PK), (LP, LL))):
                k('v_mfma_f32_16x16x32_bf16 %s, %s, %s, %s' % (vq(DD + 4 * n), vq(A + 4), vq(B + 4), vq(DD + 4 * n)))
            a = [ALQ + r for r in range(4)]
            ep = phi_list(a, [SC] * 4, [SC + 4] * 4, T)
            ep += ['v_cvt_pk_bf16_f32 v%d, v%d, v%d' % (a[0], a[0], a[1]), 'v_cvt_pk_bf16_f32 v%d, v%d, v%d' % (a[1], a[2], a[3])]
            ep += ['s_lshl_b32 s41, s24, 11', 's_lshl_b32 s42, s21, 8', 's_add_u32 s41, s41, s42',
                   's_add_u32 s4, s12, 0x%x' % WS_PQL, 's_addc_u32 s5, s13, 0', 's_mov_b32 s6, 0x%x' % (128 * 2048), 's_mov_b32 s7, 0x20000',
                   'buffer_store_dwordx2 %s, v23, s[4:7], s41 offen' % vq(a[0], 2)]
            ep += ['buffer_atomic_add_f32 v%d, v18, s[48:51], 0 offen offset:%d' % (DD + r, 256 * r) for r in range(4)]
            ep += ['buffer_atomic_add_f32 v%d, v19, s[48:51], 0 offen offset:%d' % (DD + 4 + r, 32 * r) for r in range(4)]
            ep += ['buffer_atomic_add_f32 v%d, v20, s[48:51], 0 offen offset:%d' % (DD + 8 + r, o) for r, o in ((2, 0), (3, 64), (0, 128))]
            ep += ['buffer_atomic_add_f32 v%d, v21, s[48:51], 0 offen offset:%d' % (DD + 12 + r, o) for r, o in ((2, 0), (3, 8), (0, 16))]
            ep += ['s_add_u32 s8, s12, 0x%x' % WS_PQM, 's_addc_u32 s9, s13, 0', 's_mov_b32 s10, 0x%x' % (128 * 16384), 's_lshl_b32 s42, s27, 9']
            for s in range(4):
                ep += ['s_add_u32 s%d, s%d, s23' % (44 + s, 44 + s), 's_lshl_b32 s%d, s%d, 14' % (44 + s, 44 + s), 's_add_u32 s%d, s%d, s42' % (44 + s, 44 + s)]
            F.add('at', ep)
            rate1 = F.total() / (4 * 7.0)
        if fr: k.wait_vm_seq(max(wseq[f] for f in fr))
        for n, (a, A, B) in enumerate(mf):
            k('v_mfma_f32_16x16x32_bf16 %s, %s, %s, %s' % (vq(a), A, B, vq(a) if j else '0'))
            if nxt: k(nxt.pop(0))
            if len(nxt) > len(mf) - n - 1 and nxt: k(nxt.pop(0))
            m_ = (todo * (n + 1)) // len(mf) - (todo * n) // len(mf)
            issue(m_)
            F.fill(8 if ph == 0 else rate1)
        assert not nxt
    assert pi[0] == len(prog)
    k.stamp()
    F.flush()
    for s in range(4):
        a = [AQ + 4 * s + r for r in range(4)]
        for t in phi_list(a, [SC + s] * 4, [SC + 4 + s] * 4, T + 4 * (s % 2)): k(t)
        k('v_cvt_pk_bf16_f32 v%d, v%d, v%d' % (a[0], a[0], a[1]))
        k('v_cvt_pk_bf16_f32 v%d, v%d, v%d' % (a[1], a[2], a[3]))
        k('buffer_store_dwordx2 %s, v22, s[8:11], s%d offen' % (vq(a[0], 2), 44 + s))
    k.end()
    return k

def slice_addr(k, vfull, vleft, sc):
    k('s_lshl_b32 s40, s%d, 11' % sc)
    k('v_lshl_add_u32 v%d, v1, 4, s40' % vfull)
    k('s_lshl_b32 s40, s%d, 8' % sc)
    k('s_add_u32 s40, s40, 16384')
    k('v_lshlrev_b32 v4, 4, v3')
    k('v_lshl_add_u32 v4, v2, 3, v4')
    k('v_add_u32 v4, s40, v4')
    k('v_mov_b32 v%d, 0x%x' % (vleft, OOB))
    k('v_cmp_gt_u32 vcc, 2, v2')
    k('v_cndmask_b32 v%d, v%d, v4, vcc' % (vleft, vleft))

def stats_out(k, vals, left, tmp, srd, voff):
    s, q, t = tmp, tmp + 1, tmp + 2
    allv = list(vals) + list(left)
    k('v_add_f32 v%d, v%d, v%d' % (s, allv[0], allv[1]))
    k('v_mul_f32 v%d, v%d, v%d' % (q, allv[0], allv[0]))
    k('v_mul_f32 v%d, v%d, v%d' % (t, allv[1], allv[1]))
    for i, r in enumerate(allv[2:]):
        k('v_add_f32 v%d, v%d, v%d' % (s, s, r))
        k('v_fmac_f32 v%d, v%d, v%d' % (q if i % 2 else t, r, r))
    k('v_add_f32 v%d, v%d, v%d' % (q, q, t))
    xlane_sum(k, s, t)
    xlane_sum(k, q, t + 1)
    k('buffer_store_dwordx2 %s, v%d, s[%d:%d], 0 offen' % (vq(s, 2), voff, srd, srd + 3))

def stats_addr(k, d, sc):
    k('s_lshr_b32 s40, s%d, 1' % sc)
    k('s_lshl_b32 s40, s40, 8')
    k('s_and_b32 s41, s%d, 1' % sc)
    k('s_lshl_b32 s41, s41, 3')
    k('s_add_u32 s40, s40, s41')
    k('v_lshl_add_u32 v4, v3, 4, s40')
    k('v_mov_b32 v%d, 0x%x' % (d, OOB))
    k('v_cmp_eq_u32 vcc, 0, v2')
    k('v_cndmask_b32 v%d, v%d, v4, vcc' % (d, d))

def gen_attn():
    KVB = 0; WOI = 65536
    k = K('attn_kernel', 256, 256, WOI + WOS_C, 224 + 128, 224)
    k.begin()
    k('s_load_dwordx2 s[12:13], s[0:1], %d' % KA_WS)
    k.ids(20)
    decode(k, MAPS['att'])
    k('s_lshl_b32 s23, s22, 2')
    k('s_add_u32 s24, s23, s20')
    k('v_and_b32 v4, 3, v3')
    k('v_lshrrev_b32 v5, 2, v3')
    k('v_lshlrev_b32 v6, 8, v4')
    k('v_lshl_add_u32 v6, v5, 6, v6')
    k('v_lshl_add_u32 v6, v2, 4, v6')
    k('v_lshlrev_b32 v7, 5, v4')
    k('v_lshl_add_u32 v7, v5, 3, v7')
    k('v_add_u32 v7, 1024, v7')
    k('v_min_u32 v4, 2, v4')
    k('v_lshlrev_b32 v8, 6, v4')
    k('v_lshl_add_u32 v8, v2, 4, v8')
    k('v_add_u32 v8, 1152, v8')
    k('v_lshlrev_b32 v9, 3, v4')
    k('v_add_u32 v9, 1344, v9')
    k('v_mov_b32 v4, 0x%x' % OOB)
    k('v_cmp_eq_u32 vcc, 0, v2')
    k('v_cndmask_b32 v10, v4, v7, vcc')
    k('v_cndmask_b32 v11, v4, v9, vcc')
    k('v_cmp_eq_u32 vcc, 1, v2')
    k('v_cndmask_b32 v7, v4, v7, vcc')
    k('v_cndmask_b32 v9, v4, v9, vcc')
    k('s_mul_i32 s25, s20, %d' % (8 * KVH))
    k('s_waitcnt lgkmcnt(0)')
    k.srd(4, 12, WS_KVT, 8 * KVH, soff=25)
    ST = 64
    for n in range(8):
        s = ST + 12 * n
        if n % 2 == 0: k('s_mov_b32 s26, %d' % (n * KVH))
        o = (n % 2) * KVH
        lo = (n % 4) < 2
        k('buffer_load_dwordx4 %s, v6, s[4:7], s26 offen offset:%d' % (vq(s), o))
        k('buffer_load_dwordx4 %s, v8, s[4:7], s26 offen offset:%d' % (vq(s + 4), o))
        k('buffer_load_dwordx2 %s, v%d, s[4:7], s26 offen offset:%d' % (vq(s + 8, 2), 10 if lo else 7, o))
        k('buffer_load_dwordx2 %s, v%d, s[4:7], s26 offen offset:%d' % (vq(s + 10, 2), 11 if lo else 9, o))
    k('v_lshlrev_b32 v5, 4, v1')
    k('v_lshlrev_b32 v12, 3, v1')
    k('v_cmp_gt_u32 vcc, 32, v1')
    k('v_cndmask_b32 v13, v4, v12, vcc')
    k('s_lshl_b32 s25, s24, 14')
    k.srd(8, 12, WS_PQM, 16384, soff=25)
    k('s_lshl_b32 s25, s24, 11')
    k.srd(16, 12, WS_PQL, 2048, soff=25)
    k('s_mul_i32 s25, s21, %d' % WOS_C)
    k.srd(36, 12, WS_WOS, WOS_C, soff=25)
    k('s_lshl_b32 s27, s20, 10')
    k('s_add_u32 s28, s27, %d' % WOI)
    dseq = {}; pseq = {}
    def pload(h):
        if h % 8 == 0: k('s_mov_b32 s29, %d' % (h * 512))
        k('buffer_load_dwordx2 %s, v12, s[8:11], s29 offen offset:%d' % (aq(4 * h, 2), (h % 8) * 512))
        pseq[h] = k.one('buffer_load_dwordx2 %s, v13, s[16:19], 0 offen offset:%d' % (aq(4 * h + 2, 2), (h // 4) * 256))
    def dload(n):
        k('s_add_u32 m0, s28, %d' % (n * 4096))
        k('s_add_u32 s30, s27, %d' % (n * 4096))
        dseq[n] = k.one('buffer_load_dwordx4 v5, s[36:39], s30 offen lds')
    prog = [('p', 0), ('p', 1), ('p', 2), ('p', 3), ('d', 18), ('d', 19), ('d', 20), ('d', 0), ('d', 1), ('d', 2), ('d', 3)]
    for p in range(2, 16):
        prog += [('p', 2 * p), ('p', 2 * p + 1), ('d', p + 2)]
    prog += [('x', 0)]
    XR = 20
    def xload():
        k('s_mul_i32 s25, s24, %d' % TILE)
        k.srd(4, 12, WS_XA, TILE, soff=25)
        k.srd(44, 12, WS_XBUF, TILE, soff=25)
        k('buffer_load_dwordx4 %s, v14, s[4:7], 0 offen' % vq(XR))
        k('buffer_load_dwordx4 %s, v14, s[4:7], 0 offen offset:1024' % vq(XR + 4))
        k('buffer_load_dwordx2 %s, v15, s[4:7], 0 offen' % vq(XR + 8, 2))
    pi = [0]
    def issue(n):
        for _ in range(n):
            if pi[0] >= len(prog): return
            kind, a = prog[pi[0]]; pi[0] += 1
            if kind == 'p': pload(a)
            elif kind == 'd': dload(a)
            else: xload()
    issue(8)
    slice_addr(k, 14, 15, 21)
    stats_addr(k, 16, 21)
    k('s_lshl_b32 s25, s20, 14')
    k('v_add_u32 v17, s25, v5')
    k.stamp()
    for n in range(8):
        s = ST + 12 * n
        z = 160 + 8 * (n % 2)
        odd = n % 2
        k('v_cvt_pk_bf16_f32 v%d, v%d, v%d' % (z, s, s + 1))
        k('v_cvt_pk_bf16_f32 v%d, v%d, v%d' % (z + 1, s + 2, s + 3))
        k('v_cvt_pk_bf16_f32 v%d, v%d, v%d' % (z + 2 + odd, s + 8, s + 9))
        k('v_cvt_pk_bf16_f32 v%d, v%d, v%d' % (z + 4, s + 4, s + 5))
        k('v_cvt_pk_bf16_f32 v%d, v%d, v%d' % (z + 5, s + 6, s + 7))
        k('v_cvt_pk_bf16_f32 v%d, v%d, v%d' % (z + 6 + odd, s + 10, s + 11))
        if n < 2:
            k('v_mov_b32 v%d, 0' % (z + 3 - odd))
            k('v_mov_b32 v%d, 0' % (z + 7 - odd))
        k('ds_write_b128 v17, %s offset:%d' % (vq(z), 2048 * n))
        k('ds_write_b128 v17, %s offset:%d' % (vq(z + 4), 2048 * n + 1024))
        issue(1)
    k('v_add_u32 v18, %d, v5' % WOI)
    k('v_add_u32 v19, %d, v5' % (WOI + 65536))
    k('v_and_b32 v4, 7, v3')
    k('v_lshl_add_u32 v4, v2, 3, v4')
    k('v_lshlrev_b32 v4, 4, v4')
    k('v_add_u32 v30, %d, v4' % (WOI + 73728))
    k('v_cmp_eq_u32 s[48:49], 1, v2')
    k('v_cmp_eq_u32 s[50:51], 2, v2')
    k('v_cmp_eq_u32 s[52:53], 3, v2')
    k('s_mov_b32 s31, 0xffff0000')
    ACC = 32; EPS = 52; AF = 64; DD = 112; WF = 144; OQ = 184; PP = 192; LQ = 196; T = 204
    k('v_mov_b32 v%d, 0' % EPS)
    k('v_mov_b32 v%d, 0' % (EPS + 1))
    k('v_mov_b32 v%d, %s' % (EPS + 2, f32(1e-6)))
    k('v_mov_b32 v%d, %s' % (EPS + 3, f32(1e-6)))
    def dsync(upto):
        k.wait_vm_seq(max(dseq[n] for n in list(range(upto + 1)) + [18, 19, 20]))
        k('s_barrier')
    k('s_waitcnt lgkmcnt(0)')
    k.stamp()
    dsync(3)
    k.stamp()
    def a_reads(p):
        for j in range(2):
            h = 2 * p + j
            s = AF + 16 * (p % 3) + 8 * j
            k('ds_read_b128 %s, v5 offset:%d' % (vq(s), KVB + h * 2048))
            k('ds_read_b128 %s, v5 offset:%d' % (vq(s + 4), KVB + h * 2048 + 1024))
    def w_reads(p):
        for i in range(5):
            d = WF + 20 * (p % 2) + 4 * i
            if i < 4: k('ds_read_b128 %s, v%d offset:%d' % (vq(d), 18 if p < 16 else 19, (p % 16) * 4096 + 1024 * i))
            else: k('ds_read_b128 %s, v30 offset:%d' % (vq(d), p * 512))
    def b_mfma(p):
        for j in range(2):
            h = 2 * p + j
            s = AF + 16 * (p % 3) + 8 * j
            d = DD + 16 * (p % 2) + 8 * j
            k('v_mfma_f32_16x16x32_bf16 %s, %s, %s, %s' % (vq(d + 4), vq(s + 4), aq(4 * h), vq(EPS)))
            k('v_mfma_f32_16x16x32_bf16 %s, %s, %s, 0' % (vq(d), vq(s), aq(4 * h)))
    def c_valu(p):
        out = []
        o = OQ + 4 * (p % 2)
        ds = [DD + 16 * (p % 2) + 8 * j for j in range(2)]
        for j in range(2): out.append('v_rcp_f32 v%d, v%d' % (T + j, ds[j] + 6))
        for j in range(2):
            for r in (4, 5, 0, 1, 2, 3): out.append('v_mul_f32 v%d, v%d, v%d' % (ds[j] + r, ds[j] + r, T + j))
        for j in range(2):
            h = 2 * p + j
            out.append('v_cvt_pk_bf16_f32 v%d, v%d, v%d' % (o + 2 * j, ds[j], ds[j] + 1))
            out.append('v_cvt_pk_bf16_f32 v%d, v%d, v%d' % (o + 2 * j + 1, ds[j] + 2, ds[j] + 3))
            out.append('v_cvt_pk_bf16_f32 v%d, v%d, v%d' % (PP + h % 4, ds[j] + 4, ds[j] + 5))
        if p % 2 == 1:
            m = p // 2
            out.append('v_cndmask_b32 v%d, v%d, v%d, s[48:49]' % (LQ + m, PP, PP + 1))
            out.append('v_cndmask_b32 v%d, v%d, v%d, s[50:51]' % (LQ + m, LQ + m, PP + 2))
            out.append('v_cndmask_b32 v%d, v%d, v%d, s[52:53]' % (LQ + m, LQ + m, PP + 3))
        return out
    def d_list(p):
        o = OQ + 4 * (p % 2) if p < 16 else LQ + 4 * (p - 16)
        return ['v_mfma_f32_16x16x32_bf16 %s, %s, %s, %s' % (vq(ACC + 4 * i), vq(WF + 20 * (p % 2) + 4 * i), vq(o), vq(ACC + 4 * i) if p else '0') for i in range(5)]
    a_reads(0); a_reads(1)
    b_mfma(0)
    for p in range(16):
        if p in (8,): k.stamp()
        issue(3)
        if p % 4 == 0 and p:
            while (p + 3 if p < 12 else 17) not in dseq: issue(1)
            dsync(p + 3 if p < 12 else 17)
        if p + 2 < 16: a_reads(p + 2)
        w_reads(p)
        if p + 1 < 16:
            while 2 * p + 3 not in pseq: issue(1)
            b_mfma(p + 1)
        cv = c_valu(p)
        dl = d_list(p - 1) if p >= 1 else []
        per = (len(cv) + 4) // 5
        for m in dl:
            k(m)
            for _ in range(per):
                if cv: k(cv.pop(0))
        for t in cv: k(t)
    issue(100)
    w_reads(16)
    for m in d_list(15): k(m)
    w_reads(17)
    for m in d_list(16): k(m)
    for m in d_list(17): k(m)
    k.stamp()
    k('s_lshl_b32 s25, s24, 10')
    k.srd(4, 12, WS_STB, 1024, soff=25)
    V = 64
    for i in range(10):
        k('v_lshlrev_b32 v%d, 16, v%d' % (V + 2 * i, XR + i))
        k('v_and_b32 v%d, s31, v%d' % (V + 2 * i + 1, XR + i))
    k('v_cmp_gt_u32 vcc, 2, v2')
    for r in range(4): k('v_cndmask_b32 v%d, v%d, v%d, vcc' % (ACC + 16 + r, EPS, ACC + 16 + r))
    for i in range(20): k('v_add_f32 v%d, v%d, v%d' % (V + i, V + i, ACC + i))
    for i in range(10): k('v_cvt_pk_bf16_f32 v%d, v%d, v%d' % (XR + i, V + 2 * i, V + 2 * i + 1))
    k('buffer_store_dwordx4 %s, v14, s[44:47], 0 offen' % vq(XR))
    k('buffer_store_dwordx4 %s, v14, s[44:47], 0 offen offset:1024' % vq(XR + 4))
    k('buffer_store_dwordx2 %s, v15, s[44:47], 0 offen' % vq(XR + 8, 2))
    stats_out(k, range(V, V + 16), range(V + 16, V + 20), T, 4, 16)
    k.end()
    return k

GELU_A = -2.0 * math.sqrt(2.0 / math.pi) * LOG2E
GELU_B = GELU_A * 0.044715
MLP_OPT = dict(lmin=12, nr=60, vm=70, st='')

def gen_mlp():
    XI = 0; HI = 4 * XT; SA = HI + 73728
    k = K('mlp_kernel', 256, 256, SA + 256, 512, 256)
    k.begin()
    k('s_load_dwordx2 s[12:13], s[0:1], %d' % KA_WS)
    k.ids(20)
    decode(k, MAPS['mlp'])
    k('s_lshl_b32 s23, s22, 2')
    k('s_add_u32 s24, s23, s20')
    k('v_lshlrev_b32 v5, 4, v1')
    k('s_lshl_b32 s25, s24, 10')
    k('s_mul_i32 s26, s24, %d' % TILE)
    k('s_lshl_b32 s27, s21, 2')
    k('s_add_u32 s27, s27, s20')
    k('s_mul_i32 s27, s27, %d' % STREAM_WAVE)
    k('s_mul_i32 s30, s20, %d' % XT)
    k('s_waitcnt lgkmcnt(0)')
    k.srd(4, 12, WS_STB, 1024, soff=25)
    ST = 28
    k('buffer_load_dwordx4 %s, v5, s[4:7], 0 offen' % vq(ST))
    k.srd(8, 12, WS_XBUF, TILE, soff=26)
    k.srd(16, 12, WS_STREAM, STREAM_WAVE, soff=27)
    NR = MLP_OPT['nr']; LMIN = MLP_OPT['lmin']; VM = MLP_OPT['vm']
    FR = []
    for q in range(3):
        FR += [('w', 54 * q + n) for n in range(54)] + [('a', 3 * q + i) for i in range(3)]
    FR += [('w', n) for n in range(162, 324)]
    xseq = {}; fseq = {}
    st = dict(nf=0, vt=0.0, est=0.0, nx=0)
    def xload():
        j = st['nx']; st['nx'] += 1
        if j % 4 == 0:
            k('s_add_u32 m0, s30, %d' % (j * 1024))
            k('s_mov_b32 s34, %d' % (j * 1024))
        xseq[j] = k.one('buffer_load_dwordx4 v5, s[8:11], s34 offen offset:%d lds' % ((j % 4) * 1024))
        st['vt'] += VM
    def fload():
        f = st['nf']; st['nf'] += 1
        kind, n = FR[f]
        d = aq(4 * (f % NR))
        if kind == 'w':
            if n % 4 == 0 or FR[f - 1][0] == 'a': k('s_mov_b32 s28, %d' % (n // 4 * 4096))
            fseq[f] = k.one('buffer_load_dwordx4 %s, v5, s[16:19], s28 offen offset:%d' % (d, (n % 4) * 1024))
            st['vt'] += VM
        else:
            fseq[f] = k.one('buffer_load_dwordx4 %s, v6, s[36:39], s%d offen offset:%d' % (d, (29, 33, 35)[n // 3], (n % 3) * 256))
            st['vt'] += VM / 4
    for j in range(3): xload()
    for f in range(9): fload()
    for j in range(3): xload()
    k('v_mov_b32 v8, 0x%x' % OOB)
    k('v_cmp_gt_u32 vcc, 16, v1')
    k('v_cndmask_b32 v6, v8, v5, vcc')
    k('s_mul_i32 s29, s21, 9216')
    k.srd(36, 12, WS_AUG1, 9216, soff=29)
    k('s_mul_i32 s29, s20, 768')
    k('s_add_u32 s33, s29, 3072')
    k('s_add_u32 s35, s29, 6144')
    k('v_add_u32 v7, %d, v5' % (2 * XT))
    k('v_add_u32 v8, %d, v5' % HI)
    k('v_add_u32 v9, %d, v5' % (HI + 36864))
    k('s_mul_i32 s27, s20, 3')
    for i in range(3):
        k('s_add_u32 s32, s27, %d' % i)
        k('s_lshr_b32 s31, s32, 1')
        k('s_lshl_b32 s31, s31, 12')
        k('s_and_b32 s32, s32, 1')
        k('s_lshl_b32 s32, s32, 3')
        k('s_add_u32 s32, s32, s31')
        k('v_add_u32 v%d, s32, v8' % (10 + i))
    k('s_add_u32 s32, s30, %d' % (18 * 1024))
    k('v_add_u32 v13, s32, v5')
    k('s_lshl_b32 s32, s20, 6')
    k('s_add_u32 s32, s32, %d' % SA)
    k('v_lshl_add_u32 v14, v3, 2, s32')
    for f in range(6): fload()
    k.stamp()
    stats_to_lds(k, ST, 32, True, 13, 14)
    P = [32, 80]; O1 = 80; O2 = [32, 48, 64, 160]; BF = 176; GT = 208; GC = 16
    def x_read(j, t, dst):
        return 'ds_read_b128 %s, v%d offset:%d' % (vq(dst), 5 if t < 2 else 7, (t % 2) * XT + j * 1024)
    def h_read(kg, t, dst):
        return 'ds_read_b128 %s, v%d offset:%d' % (vq(dst), 8 if kg < 9 else 9, (kg % 9) * 4096 + t * 1024)
    def gelu_list(q):
        out = []
        for i in range(3):
            for t in range(4):
                a = P[q % 2] + 16 * i + 4 * t
                n = (i * 4 + t) % 2
                tm = GT + 4 * n; pk = GT + 8 + 2 * n
                R = range(4)
                out += ['v_mul_f32 v%d, v%d, v%d' % (tm + r, a + r, a + r) for r in R]
                out += ['v_fma_f32 v%d, v%d, v%d, v%d' % (tm + r, tm + r, GC + 4 + t, GC + t) for r in R]
                out += ['v_mul_f32 v%d, v%d, v%d' % (tm + r, tm + r, a + r) for r in R]
                out += ['v_exp_f32 v%d, v%d' % (tm + r, tm + r) for r in R]
                out += ['v_fma_f32 v%d, v%d, v%d, v%d' % (tm + r, tm + r, GC + 8 + t, GC + 8 + t) for r in R]
                out += ['v_rcp_f32 v%d, v%d' % (tm + r, tm + r) for r in R]
                out += ['v_mul_f32 v%d, v%d, v%d' % (tm + r, tm + r, a + r) for r in R]
                out += ['v_cvt_pk_bf16_f32 v%d, v%d, v%d' % (pk, tm, tm + 1), 'v_cvt_pk_bf16_f32 v%d, v%d, v%d' % (pk + 1, tm + 2, tm + 3)]
                out += ['ds_write_b64 v%d, %s offset:%d' % (10 + i, vq(pk, 2), q * 24576 + t * 1024)]
        return out
    SF = MLP_OPT['st']
    def epi_pair(A, B, p):
        out = []
        for t in range(4):
            a = A + 4 * t; b = B + 4 * t
            out += ['v_cvt_pk_bf16_f32 v%d, v%d, v%d' % (a, a, a + 1), 'v_cvt_pk_bf16_f32 v%d, v%d, v%d' % (a + 1, a + 2, a + 3),
                    'v_cvt_pk_bf16_f32 v%d, v%d, v%d' % (a + 2, b, b + 1), 'v_cvt_pk_bf16_f32 v%d, v%d, v%d' % (a + 3, b + 2, b + 3),
                    'buffer_store_dwordx4 %s, v15, s[40:43], s%d offen offset:%d%s' % (vq(a), 44 + t, 1024 * p, SF)]
        return out
    def epi_single(A):
        out = []
        for t in range(4):
            a = A + 4 * t
            out += ['v_cvt_pk_bf16_f32 v%d, v%d, v%d' % (a, a, a + 1), 'v_cvt_pk_bf16_f32 v%d, v%d, v%d' % (a + 1, a + 2, a + 3),
                    'buffer_store_dwordx2 %s, v4, s[40:43], s%d offen%s' % (vq(a, 2), 44 + t, SF)]
        return out
    F = Filler(k)
    steps = []
    for q in range(3):
        steps += [('g1', q, j) for j in range(19)]
    steps += [('a', 0, kg) for kg in range(18)] + [('c', 0, kg) for kg in range(18)]
    def xsync(j):
        hi = min(j + 2, 17)
        while st['nx'] <= hi: xload()
        k.wait_vm_seq(xseq[hi])
        if j == 0: k('s_waitcnt lgkmcnt(0)')
        k('s_barrier')
    xsync(0)
    k.stamp()
    for t in range(4): k(x_read(0, t, BF + 4 * t))
    k('v_lshlrev_b32 v4, 2, v3')
    k('v_add_u32 v4, %d, v4' % SA)
    for t in range(4): k('ds_read_b32 v%d, v4 offset:%d' % (GC + 8 + t, 64 * t))
    su = []
    for t in range(4):
        s_ = GC + 8 + t
        su += ['v_mul_f32 v%d, %s, v%d' % (GC + t, f32(GELU_A), s_), 'v_mul_f32 v%d, v%d, v%d' % (GC + 4 + t, s_, s_),
               'v_mul_f32 v%d, v%d, v%d' % (GC + 4 + t, GC + 4 + t, s_), 'v_mul_f32 v%d, %s, v%d' % (GC + 4 + t, f32(GELU_B), GC + 4 + t),
               'v_rcp_f32 v%d, v%d' % (s_, s_)]
    su += ['s_mul_i32 s32, s21, %d' % XB, 's_mul_i32 s31, s22, %d' % (4 * TILE), 's_add_u32 s32, s32, s31',
           's_add_u32 s40, s12, 0x%x' % WS_PART, 's_addc_u32 s41, s13, 0', 's_add_u32 s40, s40, s32', 's_addc_u32 s41, s41, 0',
           's_mov_b32 s42, %d' % (4 * TILE), 's_mov_b32 s43, 0x20000',
           's_lshl_b32 s32, s20, 12', 'v_add_u32 v15, s32, v5',
           's_lshl_b32 s32, s20, 9', 's_add_u32 s32, s32, 16384', 'v_lshl_add_u32 v4, v1, 3, s32']
    su += ['s_mov_b32 s%d, %d' % (44 + t, TILE * t) for t in range(4)]
    F.add('su', su)
    f = 0
    rate = 8.0
    nlines = [len(k.lines)]
    def tick():
        c = sum(cost(l.strip()) if not l.strip().startswith('v_mfma') else 8 for l in k.lines[nlines[0]:])
        nlines[0] = len(k.lines)
        st['est'] += max(16, c)
    st['est'] = 0.0; st['vt'] = st['vt'] - 10 * VM
    for si, (kind, q, j) in enumerate(steps):
        if j == 0 or (kind == 'a' and j == 12): k.stamp()
        if kind == 'g1' and j == 0 and q >= 1:
            F.add(q - 1, gelu_list(q - 1)); rate = F.total() / (228.0 - 6)
        if kind == 'a' and j == 0:
            F.add(2, gelu_list(2)); rate = F.total() / (240.0 - 26)
        if kind == 'c' and j == 0:
            F.add('e', epi_pair(O1, O1 + 16, 0) + epi_pair(O1 + 32, O1 + 48, 1) + epi_single(O1 + 64)); rate = 4.0
        b = BF + 16 * (si % 2); bn = BF + 16 * ((si + 1) % 2)
        nxt = []
        if si + 1 < len(steps):
            k2, q2, j2 = steps[si + 1]
            if k2 == 'g1' and q2 == 0 and j2 % 3 == 0 and j2 < 18: xsync(j2)
            if k2 == 'g1' and j2 == 0 and q2 == 2: F.flush(0)
            if k2 == 'a' and j2 in (0, 12):
                tag = 1 if j2 == 0 else 2
                F.flush(tag)
                k.wait_lg_seq(F.last[tag])
                k('s_barrier')
            nxt = [x_read(j2, t, bn + 4 * t) if k2 == 'g1' else h_read(j2, t, bn + 4 * t) for t in range(4)]
        nt_n = {'g1': 3, 'a': 5, 'c': 4}[kind]
        while st['nf'] < f + nt_n: fload()
        k.wait_vm_seq(fseq[f + nt_n - 1])
        cnt = 0
        for i in range(nt_n):
            w = aq(4 * (f % NR))
            for t in range(4):
                a = vq({'g1': P[q % 2] + 16 * i, 'a': O1 + 16 * i, 'c': O2[i % 4]}[kind] + 4 * t)
                k('v_mfma_f32_16x16x32_bf16 %s, %s, %s, %s' % (a, w, vq(b + 4 * t), a if j else '0'))
                if nxt and cnt % 2 == 0: k(nxt.pop(0))
                cnt += 1
                if t == 3:
                    if st['nx'] < 18 and i == 0: xload()
                    while st['nf'] < len(FR) and st['nf'] - f - 1 < NR - 1 and (st['nf'] - f - 1 < LMIN or st['vt'] < st['est']):
                        if st['vt'] > st['est']: st['est'] = st['vt']
                        fload()
                F.fill(rate)
                tick()
            f += 1
        assert not nxt
    assert f == len(FR) and not F.q
    k.stamp()
    for t in epi_pair(O2[0], O2[1], 2) + epi_pair(O2[2], O2[3], 3): k(t)
    print('mlp est', st['est'], 'vt', st['vt'])
    k.end()
    return k

def gen_red(layer):
    k = K('red%d_kernel' % layer, 256, 256, 0, 136, 136)
    k.begin()
    k('s_load_dwordx2 s[4:5], s[0:1], %d' % KA_B2)
    k('s_load_dwordx2 s[6:7], s[0:1], %d' % KA_OUT)
    k('s_load_dwordx2 s[12:13], s[0:1], %d' % KA_WS)
    k.ids(20)
    decode(k, MAPS['red'])
    k('s_lshl_b32 s23, s22, 2')
    k('s_add_u32 s24, s23, s20')
    k('s_mul_i32 s25, s24, %d' % TILE)
    slice_addr(k, 14, 15, 21)
    k('s_lshr_b32 s40, s21, 2')
    k('s_lshl_b32 s40, s40, 10')
    k('s_and_b32 s41, s21, 3')
    k('s_lshl_b32 s41, s41, 7')
    k('s_add_u32 s40, s40, s41')
    k('s_add_u32 s40, s40, 16384')
    k('v_lshlrev_b32 v4, 3, v3')
    k('v_lshl_add_u32 v4, v2, 9, v4')
    k('v_add_u32 v4, s40, v4')
    k('v_mov_b32 v13, 0x%x' % OOB)
    k('v_cndmask_b32 v13, v13, v4, vcc')
    k('s_waitcnt lgkmcnt(0)')
    k.srd(8, 12, WS_PART, 8 * XB, soff=25)
    k('s_sub_u32 s10, s10, s25')
    S = 16
    for c in range(8):
        d = S + 12 * c
        k('s_mov_b32 s26, %d' % (c * XB))
        k('buffer_load_dwordx4 %s, v14, s[8:11], s26 offen' % vq(d))
        k('buffer_load_dwordx4 %s, v14, s[8:11], s26 offen offset:1024' % vq(d + 4))
        k('buffer_load_dwordx2 %s, v13, s[8:11], s26 offen' % vq(d + 8, 2))
    k.srd(16, 12, WS_XBUF, TILE, soff=25)
    d = S + 96
    k('buffer_load_dwordx4 %s, v14, s[16:19], 0 offen' % vq(d))
    k('buffer_load_dwordx4 %s, v14, s[16:19], 0 offen offset:1024' % vq(d + 4))
    k('buffer_load_dwordx2 %s, v15, s[16:19], 0 offen' % vq(d + 8, 2))
    k.srd(28, 4, 0, 1152)
    k('s_mul_i32 s26, s21, 144')
    k('v_lshlrev_b32 v5, 4, v2')
    k('v_lshlrev_b32 v6, 3, v2')
    k('v_mov_b32 v7, 0x%x' % OOB)
    k('v_cndmask_b32 v7, v7, v6, vcc')
    d = S + 108
    k('buffer_load_dwordx4 %s, v5, s[28:31], s26 offen' % vq(d))
    k('buffer_load_dwordx4 %s, v5, s[28:31], s26 offen offset:64' % vq(d + 4))
    k('buffer_load_dwordx2 %s, v7, s[28:31], s26 offen offset:128' % vq(d + 8, 2))
    if layer == 0:
        k.srd(32, 12, WS_XA, TILE, soff=25)
        k('s_lshl_b32 s27, s24, 10')
        k.srd(36, 12, WS_STA, 1024, soff=27)
        stats_addr(k, 12, 21)
        k.srd(44, 12, WS_KVT, KVT_BYTES)
        for i in range(4): k('v_mov_b32 v%d, 0' % (8 + i))
        k('v_lshlrev_b32 v4, 4, v0')
        k('s_lshl_b32 s27, s2, 12')
        k('s_min_u32 s27, s27, 0x10000')
        k('buffer_store_dwordx4 v[8:11], v4, s[44:47], s27 offen')
    else:
        k('s_mul_i32 s27, s24, %d' % (16 * 1152))
        k('s_add_u32 s27, s27, s26')
        k.srd(32, 6, 0, XB)
        k('v_mul_u32_u24 v4, 1152, v3')
        k('v_add_u32 v14, v4, v5')
        k('v_add_u32 v4, v4, v6')
        k('v_mov_b32 v15, 0x%x' % OOB)
        k('v_cndmask_b32 v15, v15, v4, vcc')
    k('s_mov_b32 s48, 0xffff0000')
    A = 136 - 0
    k.vgpr = k.accum = 160
    for n in range(10):
        x = S + 12 * n
        for i in range(10):
            if n == 0:
                k('v_lshlrev_b32 v%d, 16, v%d' % (A + 2 * i, x + i))
                k('v_and_b32 v%d, s48, v%d' % (A + 2 * i + 1, x + i))
            else:
                k('v_lshlrev_b32 v%d, 16, v%d' % (156 + 2 * (i % 2), x + i))
                k('v_and_b32 v%d, s48, v%d' % (157 + 2 * (i % 2), x + i))
                k('v_add_f32 v%d, v%d, v%d' % (A + 2 * i, A + 2 * i, 156 + 2 * (i % 2)))
                k('v_add_f32 v%d, v%d, v%d' % (A + 2 * i + 1, A + 2 * i + 1, 157 + 2 * (i % 2)))
    for i in range(10): k('v_cvt_pk_bf16_f32 v%d, v%d, v%d' % (S + i, A + 2 * i, A + 2 * i + 1))
    if layer == 0:
        k('buffer_store_dwordx4 %s, v14, s[32:35], 0 offen' % vq(S))
        k('buffer_store_dwordx4 %s, v14, s[32:35], 0 offen offset:1024' % vq(S + 4))
        k('buffer_store_dwordx2 %s, v15, s[32:35], 0 offen' % vq(S + 8, 2))
        stats_out(k, range(A, A + 16), range(A + 16, A + 20), 8, 36, 12)
    else:
        k('buffer_store_dwordx4 %s, v14, s[32:35], s27 offen' % vq(S))
        k('buffer_store_dwordx4 %s, v14, s[32:35], s27 offen offset:64' % vq(S + 4))
        k('buffer_store_dwordx2 %s, v15, s[32:35], s27 offen offset:128' % vq(S + 8, 2))
    k.end()
    return k

def build(kernels, order):
    out = []
    out.append('; generated by dev/gen2.py -- linear attention + mixer MLP, two interleaved layers')
    for k in order: out.append(k.launch_line())
    out.append('.amdgcn_target "amdgcn-amd-amdhsa--gfx950"')
    out.append('.text')
    for k in kernels: out.append(k.text())
    out.append('.section .rodata,"a"')
    for k in kernels: out.append(k.desc())
    return '\n'.join(out)

if __name__ == '__main__':
    if '--stamps' in sys.argv: STAMPS = True
    for a in sys.argv:
        if a.startswith('--map='):
            for kv in a[6:].split(','):
                kk, vv = kv.split(':'); MAPS[kk] = vv
        if a.startswith('--sf='):
            for kv in a[5:].split(','):
                kk, vv = kv.split(':'); SFL[kk] = vv.replace('+', ' ')
        if a.startswith('--mlp='):
            for kv in a[6:].split(','):
                kk, vv = kv.split(':'); MLP_OPT[kk] = (' ' + vv) if kk == 'st' else int(vv)
    p, q, a, m, r0, r1 = gen_prep(), gen_qkv(), gen_attn(), gen_mlp(), gen_red(0), gen_red(1)
    path = sys.argv[1] if len(sys.argv) > 1 and not sys.argv[1].startswith('--') else 'cdna_kernels/%s.s' % NAME
    open(path, 'w').write(build([p, q, a, m, r0, r1], [p, q, a, m, r0, q, a, m, r1]))
    for k in (p, q, a, m, r0, r1): print(k.label_name, 'lines', len(k.lines), 'nops', k.n_nops)
```

```python
import sys, re
src, dst, A, B, K = sys.argv[1], sys.argv[2], int(sys.argv[3]), int(sys.argv[4]), int(sys.argv[5])
s = open(src).read()
n = len(re.findall(r'^; @launch', s, re.M))
lines = s.split('\n')
last = max(i for i, l in enumerate(lines) if l.startswith('; @launch'))
lines.insert(last + 1, '; @launch kernel=meas_kernel grid=(1,1,1) block=(64,1,1) lds=0')
body = ['.globl meas_kernel', '.p2align 8', '.type meas_kernel,@function', 'meas_kernel:',
  's_cmp_ge_u32 s2, 1', 's_cbranch_scc1 .L_meas_end', 's_memrealtime s[20:21]', 's_load_dwordx2 s[12:13], s[0:1], 80', 'v_lshlrev_b32 v1, 12, v0', 's_waitcnt lgkmcnt(0)',
  's_add_u32 s4, s12, 0x8000000', 's_addc_u32 s5, s13, 0', 's_mov_b32 s6, 0x800000', 's_mov_b32 s7, 0x20000']
for k, L in enumerate((A, B)):
    if L == n:
        body += ['s_mov_b32 s%d, 0' % (30 + k)]
        continue
    body += ['s_mov_b32 s8, %d' % (L * 0x80000)]
    body += ['buffer_load_dword v%d, v1, s[4:7], s8 offen offset:%d sc1' % (2 + i, 1024 * i + 120) for i in range(4)]
    body += ['s_waitcnt vmcnt(0)']
    body += ['v_subrev_u32 v%d, s20, v%d' % (2 + i, 2 + i) for i in range(4)]
    body += ['v_min_i32 v2, v2, v3', 'v_min_i32 v4, v4, v5', 'v_min_i32 v2, v2, v4', 's_nop 4', 's_mov_b32 s%d, 0' % (30 + k)]
    for l in range(64): body += ['v_readlane_b32 s9, v2, %d' % l, 's_nop 1', 's_min_i32 s%d, s%d, s9' % (30 + k, 30 + k)]
body += ['s_sub_u32 s30, s31, s30', 's_mul_i32 s30, s30, %d' % K, 's_min_u32 s30, s30, 100000', 's_memrealtime s[20:21]', 's_waitcnt lgkmcnt(0)',
  '.L_meas_spin:', 's_memrealtime s[22:23]', 's_waitcnt lgkmcnt(0)', 's_sub_u32 s24, s22, s20', 's_cmp_lt_u32 s24, s30', 's_cbranch_scc1 .L_meas_spin',
  '.L_meas_end:', 's_endpgm']
desc = ['.p2align 6', '.amdhsa_kernel meas_kernel', '  .amdhsa_next_free_vgpr 8', '  .amdhsa_next_free_sgpr 40', '  .amdhsa_accum_offset 8', '  .amdhsa_group_segment_fixed_size 0',
  '  .amdhsa_kernarg_size 88', '  .amdhsa_user_sgpr_count 2', '  .amdhsa_user_sgpr_kernarg_segment_ptr 1', '  .amdhsa_system_sgpr_workgroup_id_x 1', '.end_amdhsa_kernel']
i = lines.index('.section .rodata,"a"')
lines = lines[:i] + body + [lines[i]] + desc + lines[i + 1:]
open(dst, 'w').write('\n'.join(lines))
```

```python
def mk(n_inst, loop, body):
    s = []
    s.append('; @launch kernel=t_kernel grid=(256,1,1) block=(256,1,1) lds=0')
    s.append('''.amdgcn_target "amdgcn-amd-amdhsa--gfx950"
.text
.globl t_kernel
.p2align 8
.type t_kernel,@function
t_kernel:
    s_cmp_ge_u32 s2, 256
    s_cbranch_scc1 L_end
    s_load_dwordx2 s[4:5], s[0:1], 80
    s_waitcnt lgkmcnt(0)
    s_mov_b32 s8, s4
    s_mov_b32 s9, s5
    s_mov_b32 s10, 0x100000
    s_mov_b32 s11, 0x20000
    s_mov_b32 s20, 0
    v_mov_b32 v1, 1.0
    v_mov_b32 v2, 1.0
    v_mov_b32 v3, 1.0
    s_memtime s[12:13]
    s_waitcnt lgkmcnt(0)
L_loop:''')
    for i in range(n_inst): s.append('    ' + (body % {'d': 4 + (i % 8)} if '%' in body else body))
    s.append('''    s_add_u32 s20, s20, 1
    s_cmp_lt_u32 s20, %d
    s_cbranch_scc1 L_loop
    s_memtime s[14:15]
    s_waitcnt lgkmcnt(0)
    s_sub_u32 s14, s14, s12
    v_mov_b32 v4, s14
    s_lshl_b32 s3, s2, 10
    v_lshlrev_b32 v5, 2, v0
    buffer_store_dword v4, v5, s[8:11], s3 offen
L_end:
    s_endpgm
.section .rodata,"a"
.p2align 6
.amdhsa_kernel t_kernel
  .amdhsa_next_free_vgpr 32
  .amdhsa_next_free_sgpr 24
  .amdhsa_accum_offset 32
  .amdhsa_group_segment_fixed_size 0
  .amdhsa_kernarg_size 88
  .amdhsa_user_sgpr_count 2
  .amdhsa_user_sgpr_kernarg_segment_ptr 1
  .amdhsa_system_sgpr_workgroup_id_x 1
.end_amdhsa_kernel''' % loop)
    return '\n'.join(s) + '\n'
```

```python
import sys
STP = 0x7000000
def mk(W=1, nt=2, rd=1, shape=16, order='a', swap=0, N=160, NR=12, reps=5, valu=0, trans=0, agw=1, zero=0, rep_w=1, waves=8, wf='', act=''):
    s = []
    a = s.append
    a('; @launch kernel=t_kernel grid=(256,1,1) block=(%d,1,1) lds=131072' % (64 * waves))
    a('''.amdgcn_target "amdgcn-amd-amdhsa--gfx950"
.text
.globl t_kernel
.p2align 8
.type t_kernel,@function
t_kernel:
    s_cmp_ge_u32 s2, 256
    s_cbranch_scc1 L_end
ACT
    s_load_dwordx2 s[4:5], s[0:1], 80
    v_lshrrev_b32 v4, 6, v0
    v_and_b32 v1, 63, v0
    v_readfirstlane_b32 s19, v4
    v_lshlrev_b32 v5, 4, v1
    s_and_b32 s21, s2, 6
    s_bfe_u32 s23, s2, 0x10003
    s_add_u32 s21, s21, s23
    s_lshl_b32 s21, s21, 3
    s_add_u32 s21, s21, s19
    s_mul_i32 s21, s21, %d
    s_lshl_b32 s20, s19, 13
    s_waitcnt lgkmcnt(0)
    s_add_u32 s8, s4, s21
    s_addc_u32 s9, s5, 0
    s_mov_b32 s10, %d
    s_mov_b32 s11, 0x20000
    s_mov_b32 s12, s4
    s_mov_b32 s13, s5
    s_mov_b32 s14, 0x8000000
    s_mov_b32 s15, 0x20000
    s_mov_b32 s34, 0''' % (N * 1024, N * 1024))
    for i in range(8 * 8 // waves):
        a('    s_add_u32 m0, s20, %d\n    s_add_u32 s22, m0, 0x2000000\n    buffer_load_dwordx4 v5, s[12:15], s22 offen lds' % (1024 * (i % 8) + 32768 * (i // 8)))
    for i in range(NR): a('    s_mov_b32 s22, %d\n    buffer_load_dwordx4 a[%d:%d], v5, s[8:11], s22 offen' % (1024 * i, 4 * i, 4 * i + 3))
    for i in range(8): a('    s_mov_b32 s22, %d\n    buffer_load_dwordx4 v[%d:%d], v5, s[8:11], s22 offen' % (1024 * (20 + i), 144 + 4 * i, 147 + 4 * i))
    for i in range(16, 144): a('    v_mov_b32 v%d, 0' % i)
    for i in range(176, 184): a('    v_mov_b32 v%d, 1.0' % i)
    a('''    s_waitcnt vmcnt(0)
L_rep:
    s_barrier
    s_memtime s[60:61]
    s_memrealtime s[64:65]''')
    reg = lambda i: 'a[%d:%d]' % (4 * i, 4 * i + 3)
    issued = [0]
    def wl():
        f = issued[0]; issued[0] += 1
        if f % 4 == 0: a('    s_mov_b32 s28, %d' % (f * 1024))
        a('    buffer_load_dwordx4 %s, v5, s[8:11], s28 offen offset:%d %s' % (reg(f % NR), 1024 * (f % 4), wf))
    if W:
        for f in range(NR - nt): wl()
    nst = N // nt; nv = [0]
    def fill(n):
        for _ in range(n):
            r = 176 + nv[0] % 8
            if trans and nv[0] % trans == trans - 1: a('    v_exp_f32 v%d, v%d' % (8 + nv[0] % 8, 32 + nv[0] % 16))
            else: a('    v_fma_f32 v%d, v%d, v%d, v%d' % (8 + nv[0] % 8, 32 + nv[0] % 16, r, 48 + nv[0] % 8))
            nv[0] += 1
    acc = 0.0
    for st in range(nst):
        b = 144 + 16 * (st % 2); bn = 144 + 16 * ((st + 1) % 2)
        nxt = ['    ds_read_b128 v[%d:%d], v5 offset:%d' % (bn + 4 * t, bn + 4 * t + 3, 1024 * ((4 * st + t + 4) % 64)) for t in range(4)] if rd else []
        if rd: a('    s_waitcnt lgkmcnt(0)')
        ml = [(i, t) for i in range(nt) for t in range(4)] if order == 'a' else [(i, t) for t in range(4) for i in range(nt)]
        seen = set()
        for n, (i, t) in enumerate(ml):
            f = st * nt + i
            if W and i not in seen:
                a('    s_waitcnt vmcnt(%d)' % (issued[0] - f - 1)); seen.add(i)
            A, B = reg(f % NR), 'v[%d:%d]' % (b + 4 * t, b + 4 * t + 3)
            if swap: A, B = B, A
            if shape == 16:
                c = 'v[%d:%d]' % (32 + 16 * i + 4 * t, 35 + 16 * i + 4 * t)
                a('    v_mfma_f32_16x16x32_bf16 %s, %s, %s, %s' % (c, A, B, c))
            elif t % 2 == 0:
                c = 'v[%d:%d]' % (16 + 32 * i + 8 * t, 31 + 32 * i + 8 * t)
                a('    v_mfma_f32_32x32x16_bf16 %s, %s, %s, %s' % (c, A, B, c))
            if nxt and n % 2 == 0: a(nxt.pop(0))
            acc += valu
            fill(int(acc)); acc -= int(acc)
        for t in nxt: a(t)
        if W:
            for _ in range(nt):
                if issued[0] < N: wl()
    a('''    s_waitcnt vmcnt(0) lgkmcnt(0)
    s_memtime s[62:63]
    s_memrealtime s[66:67]
    s_waitcnt lgkmcnt(0)
    s_sub_u32 s62, s62, s60
    s_sub_u32 s66, s66, s64
    s_lshl_b32 s37, s2, 3
    s_add_u32 s37, s37, s19
    s_lshl_b32 s37, s37, 3
    s_add_u32 s37, s37, s34
    s_lshl_b32 s37, s37, 3
    s_add_u32 s37, s37, %d
    v_mov_b32 v3, 0
    v_mov_b32 v2, s62
    buffer_store_dword v2, v3, s[12:15], s37 offen
    v_mov_b32 v2, s66
    buffer_store_dword v2, v3, s[12:15], s37 offen offset:4
    s_add_u32 s34, s34, 1
    s_cmp_lt_u32 s34, %d
    s_cbranch_scc1 L_rep
L_end:
    s_endpgm
.section .rodata,"a"
.p2align 6
.amdhsa_kernel t_kernel
  .amdhsa_next_free_vgpr 256
  .amdhsa_next_free_sgpr 96
  .amdhsa_accum_offset 184
  .amdhsa_group_segment_fixed_size 0
  .amdhsa_kernarg_size 88
  .amdhsa_user_sgpr_count 2
  .amdhsa_user_sgpr_kernarg_segment_ptr 1
  .amdhsa_system_sgpr_workgroup_id_x 1
.end_amdhsa_kernel''' % (STP, reps))
    A = {'': '', 'x': '    s_bitcmp1_b32 s2, 2\n    s_cbranch_scc1 L_end', 'h': '    s_bitcmp1_b32 s2, 3\n    s_cbranch_scc1 L_end', 'q': '    s_and_b32 s3, s2, 24\n    s_cmp_eq_u32 s3, 24\n    s_cbranch_scc1 L_end'}[act]
    return '\n'.join(s).replace('ACT', A) + '\n'
CFG = {
 'bare': dict(W=0, rd=0), 'bare4': dict(W=0, rd=0, nt=4), 'bare_b': dict(W=0, rd=0, order='b'), 'bare4_b': dict(W=0, rd=0, nt=4, order='b'), 'bare_sw': dict(W=0, rd=0, swap=1), 'bare4_swb': dict(W=0, rd=0, nt=4, swap=1, order='b'),
 'bare32': dict(W=0, rd=0, shape=32),
 'lds1': dict(W=0, nt=1), 'lds2': dict(W=0, nt=2), 'lds4': dict(W=0, nt=4), 'lds5': dict(W=0, nt=5),
 'w': dict(rd=0), 'w2': dict(nt=2), 'w4': dict(nt=4), 'w5': dict(nt=5), 'w2b': dict(nt=2, order='b'), 'w4b': dict(nt=4, order='b'), 'w2sw': dict(nt=2, swap=1), 'w4sw': dict(nt=4, swap=1),
 'w2_32': dict(nt=2, shape=32), 'w2v': dict(nt=2, valu=1), 'w2t': dict(nt=2, valu=1, trans=4), 'w4t': dict(nt=4, valu=1, trans=4),
}
CFG = {'w4': dict(nt=4), 'w4nt': dict(nt=4, wf='nt'), 'w4sc1': dict(nt=4, wf='sc1'), 'w4ss': dict(nt=4, wf='sc0 sc1'), 'w4sn': dict(nt=4, wf='sc1 nt'), 'w4s0': dict(nt=4, wf='sc0'),
  'bare': dict(W=0, rd=0), 'bare_x': dict(W=0, rd=0, act='x'), 'bare_h': dict(W=0, rd=0, act='h'), 'bare_q': dict(W=0, rd=0, act='q'), 'w4_x': dict(nt=4, act='x'), 'w4_h': dict(nt=4, act='h'), 'w4_q': dict(nt=4, act='q')}
if __name__ == '__main__':
    if sys.argv[1] == 'gen':
        for n, c in CFG.items(): open('x/%s.s' % n, 'w').write(mk(**c))
    else:
        from runk import *
        from cdna_launch import _hip, _check
        rnd = bf16_np(torch.randn(0x2400000 // 2).to(torch.bfloat16))
        for n in (sys.argv[2:] or CFG):
            p = 'x_%s.s' % n
            open(p, 'w').write(mk(**CFG[n]))
            r = Runner(p)
            r.reset(0); r.sync()
            _check(_hip.hipMemcpy(ctypes.c_void_p(r.ws.ptr), rnd.ctypes.data_as(ctypes.c_void_p), rnd.nbytes, 1))
            res = []
            for it in range(5):
                r.launch(); r.sync()
                res.append(r.ws_read(STP, 2048 * 64, np.uint32).reshape(256, 8, 8, 2).astype(np.int64))
            st = np.stack(res[1:]).max(axis=2); st = st[:, st[0, :, 0, 0] > 0]
            c = np.median(st[..., 0], axis=(0, 1)); t = np.median(st[..., 1], axis=(0, 1)) / 100.0
            print('%-10s' % n, 'cyc/frag %.1f' % (c[3] / 320.0), ' us', ' '.join('%6.2f' % v for v in t[:5]), ' GHz', ' '.join('%.3f' % v for v in c[:5] / t[:5] / 1000), ' mfma/us %.1f' % (1280 / t[3]))
            del r
```
